```python
import torch

def _softmax(x, axis=-1):
    return torch.softmax(x, dim=axis)
def _gelu(x):
    return torch.nn.functional.gelu(x, approximate="tanh")
def _silu(x):
    return torch.nn.functional.silu(x)
def _sigmoid(x):
    return torch.sigmoid(x)
def _layernorm(x, axis=-1, eps=1e-5):
    m = x.mean(dim=axis, keepdim=True)
    v = x.var(dim=axis, keepdim=True, unbiased=False)
    return (x - m) / torch.sqrt(v + eps)
def _scatter_add(tgt, idx, src, axis=0):
    return tgt.clone().index_add_(axis, idx, src)
def _segment_sum(src, seg, n):
    out = torch.zeros((n,) + src.shape[1:], dtype=src.dtype)
    return out.index_add_(0, seg, src)
def _pad(x, pw):
    flat = tuple(v for pair in reversed(pw) for v in pair)
    return torch.nn.functional.pad(x, flat)

kernel_name = 'recurrent_scan__spectral_gfnet__dense_activation_silu__prompt'

def setup_inputs():

    _w = (lambda a: (lambda t: t.to(torch.bfloat16) if t.is_floating_point() else t)(torch.as_tensor(a)))
    def _A_setup():
        B, S, D = 1, 2048, 512
        Df = D // 2 + 1
        return {
            "x": _w((lambda *s: torch.randn(*s, dtype=torch.bfloat16) * 0.05)(B, S, D)),
            "w_r": _w((lambda *s: torch.randn(*s, dtype=torch.bfloat16) * 3.2)(S, Df) * 0.02),
            "w_i": _w((lambda *s: torch.randn(*s, dtype=torch.bfloat16) * 3.2)(S, Df) * 0.02),
        }
    _A_in = _A_setup()

    def _B_setup():
        B, S, D, F = 1, 2048, 512, 1376
        return {
            "x": _w((lambda *s: torch.randn(*s, dtype=torch.bfloat16) * 0.05)(B, S, D)),
            "w1": _w((lambda *s: torch.randn(*s, dtype=torch.bfloat16) * 3.2)(D, F) * (D ** -0.5)),
            "w2": _w((lambda *s: torch.randn(*s, dtype=torch.bfloat16) * 0.4)(F, D) * (F ** -0.5)),
        }
    _B_in = _B_setup()

    return {
        "A_x": _A_in["x"],
        "A_w_r": _A_in["w_r"],
        "A_w_i": _A_in["w_i"],
        "B_x": _B_in["x"],
        "B_w1": _B_in["w1"],
        "B_w2": _B_in["w2"],
    }

def reference(A_x, A_w_r, A_w_i, B_x, B_w1, B_w2):
    def _A_ref(x, w_r, w_i):
        B, S, D = x.shape
        X = (lambda x, axes=(-2,-1): torch.fft.rfft2(x.float(), dim=axes))(x, axes=(-2, -1))
        W = w_r + 1j * w_i
        X = X * W
        y = (lambda x, s, axes=(-2,-1): torch.fft.irfft2(x, s=s, dim=axes).to(torch.bfloat16))(X, (S, D), axes=(-2, -1))
        return y

    def _B_ref(x, w1, w2):
        h = torch.einsum("bsd,df->bsf", x, w1)
        h = _silu(h)
        out = torch.einsum("bsf,fd->bsd", h, w2)
        return out

    x = A_x
    xn = _layernorm(x, axis=-1)
    s = _A_ref(xn, A_w_r, A_w_i)
    g = _silu(_B_ref(xn, B_w1, B_w2))
    return x + s * g
```

```python
import re

TRANS = ('v_exp_f32','v_log_f32','v_rcp_f32','v_rsq_f32','v_sqrt_f32','v_sin_f32','v_cos_f32')

def regs_of(op):
    op = op.strip()
    out = set()
    m = re.fullmatch(r'-?\|?(v|s|a)(\d+)\|?', op)
    if m:
        out.add((m.group(1), int(m.group(2)))); return out
    m = re.fullmatch(r'-?\|?(v|s|a)\[(\d+):(\d+)\]\|?', op)
    if m:
        for i in range(int(m.group(2)), int(m.group(3))+1): out.add((m.group(1), i))
        return out
    if op in ('vcc','vcc_lo','vcc_hi'): out.add(('vcc',0))
    if op == 'exec': out.add(('exec',0))
    return out

class Asm:
    def __init__(self):
        self.lines = []
    def __call__(self, s):
        for l in s.strip('\n').split('\n'):
            l = l.split(';')[0].strip() if not l.strip().startswith(';') else ''
            if l: self.lines.append(('i', l))
    def label(self, l): self.lines.append(('l', l + ':'))
    def raw(self, l): self.lines.append(('l', l))
    def text(self):
        out = self.hazard_pass()
        return '\n'.join(('    '+t if k=='i' else t) for k,t in out) + '\n'
    @staticmethod
    def parse(ins):
        parts = ins.split(None,1)
        mn = parts[0]
        ops = []
        if len(parts) > 1:
            depth=0; cur=''
            for ch in parts[1]:
                if ch=='[': depth+=1
                if ch==']': depth-=1
                if ch==',' and depth==0: ops.append(cur); cur=''
                else: cur+=ch
            ops.append(cur)
        ops = [o.strip().split()[0] if o.strip() else '' for o in ops]
        return mn, ops
    def hazard_pass(self):
        out = []
        hist = []
        def is_valu(mn): return mn.startswith('v_') and not mn.startswith('v_mfma')
        def is_vmem(mn): return mn.startswith('buffer_') or mn.startswith('global_') or mn.startswith('flat_')
        def is_ds(mn): return mn.startswith('ds_')
        for kind, t in self.lines:
            if kind != 'i':
                out.append((kind,t)); continue
            mn, ops = self.parse(t)
            dpp = ('row_shr' in t or 'row_bcast' in t or 'quad_perm' in t or 'row_shl' in t or 'row_ror' in t or 'row_mirror' in t or 'row_half_mirror' in t or 'wave_' in t)
            dst=set(); src=set()
            if mn.startswith('buffer_store') or mn.startswith('global_store') or mn.startswith('ds_write') or mn.startswith('s_cmp') or mn.startswith('s_cbranch') or mn in ('s_waitcnt','s_barrier','s_nop','s_endpgm','s_branch'):
                for o in ops: src |= regs_of(o)
            elif mn.startswith('v_cmp') and not mn.startswith('v_cmpx'):
                dst |= regs_of(ops[0]);
                for o in ops[1:]: src |= regs_of(o)
            elif mn in ('v_add_co_u32','v_sub_co_u32','v_addc_co_u32','v_subb_co_u32','v_mad_u64_u32'):
                dst |= regs_of(ops[0]); dst |= regs_of(ops[1])
                for o in ops[2:]: src |= regs_of(o)
            else:
                if ops: dst |= regs_of(ops[0])
                for o in ops[1:]: src |= regs_of(o)
                if mn in ('v_fmac_f32','v_pk_fmac_f16'): src |= dst
                if mn.startswith('v_cndmask') and len(ops)==3: src.add(('vcc',0))
            if mn.startswith('v_mfma'): pass
            need = 0
            n = len(hist)
            for i,h in enumerate(hist[-8:]):
                dist = sum(x['ws'] for x in hist[len(hist)-len(hist[-8:])+i+1:])
                req = 0
                hv = h['valu']
                if hv and h['mn'] in TRANS and is_valu(mn) and mn not in TRANS and (h['dst'] & src): req = max(req,1)
                if hv and dpp and (h['dst'] & src): req = max(req,2)
                sg = {r for r in h['dst'] if r[0] in ('s','vcc')}
                if hv and sg:
                    if is_valu(mn) and (sg & src): req = max(req,2)
                    if (is_vmem(mn)) and (sg & src): req = max(req,5)
                    if mn.startswith('v_readlane') or mn.startswith('v_writelane'):
                        if sg & src: req = max(req,4)
                if hv and (mn.startswith('v_readlane') or mn.startswith('v_readfirstlane')) and (h['dst'] & src): req = max(req,1)
                if hv and mn.startswith('v_mfma') and (h['dst'] & src): req = max(req,2)
                if hv and mn.startswith('v_permlane') and (h['dst'] & (src|dst)): req = max(req,2)
                if h['mn'] in ('buffer_store_dwordx4','buffer_store_dwordx3','global_store_dwordx4','global_store_dwordx3') and is_valu(mn) and (h['data'] & dst): req = max(req,2)
                if req - dist > need: need = req - dist
            if need > 0:
                out.append(('i', f's_nop {need-1}'))
                hist.append(dict(mn='s_nop',dst=set(),src=set(),valu=False,ws=need,data=set()))
            ws = 1
            if mn == 's_nop': ws = int(ops[0])+1
            data=set()
            if mn.startswith('buffer_store') or mn.startswith('global_store'): data = regs_of(ops[0]) if mn.startswith('buffer') else regs_of(ops[1])
            hist.append(dict(mn=mn,dst=dst,src=src,valu=is_valu(mn),ws=ws,data=data))
            out.append((kind,t))
        return out
```

```python
from asmlib import Asm
import math

class Pool:
    def __init__(self, lo, hi):
        self.free = list(range(lo, hi+1))
        self.hi_water = lo
    def get(self):
        r = self.free.pop(0)
        self.hi_water = max(self.hi_water, r)
        return r
    def get_aligned(self, n, al):
        for i,r in enumerate(self.free):
            if r % al == 0 and all((r+j) in self.free for j in range(n)):
                for j in range(n): self.free.remove(r+j)
                self.hi_water = max(self.hi_water, r+n-1)
                return r
        raise RuntimeError('no aligned regs')
    def put(self, *rs):
        for r in rs:
            assert r not in self.free
            self.free.append(r)
        self.free.sort()

class C:
    def __init__(self, re, im): self.re=re; self.im=im

class FFT:
    def __init__(self, a, pool):
        self.a=a; self.p=pool
    def new(self):
        r=self.p.get_aligned(2,2); return C(r, r+1)
    def rel(self, *cs):
        for c in cs: self.p.put(c.re, c.im)
    def add(self, x, y):
        d=self.new(); a=self.a
        a(f'v_add_f32 v{d.re}, v{x.re}, v{y.re}'); a(f'v_add_f32 v{d.im}, v{x.im}, v{y.im}'); return d
    def sub(self, x, y):
        d=self.new(); a=self.a
        a(f'v_sub_f32 v{d.re}, v{x.re}, v{y.re}'); a(f'v_sub_f32 v{d.im}, v{x.im}, v{y.im}'); return d
    def add_mi(self, x, y, sgn):
        d=self.new(); a=self.a
        if sgn>0:
            a(f'v_add_f32 v{d.re}, v{x.re}, v{y.im}'); a(f'v_sub_f32 v{d.im}, v{x.im}, v{y.re}')
        else:
            a(f'v_sub_f32 v{d.re}, v{x.re}, v{y.im}'); a(f'v_add_f32 v{d.im}, v{x.im}, v{y.re}')
        return d
    def dft4(self, x, sign):
        t0=self.add(x[0],x[2]); t1=self.sub(x[0],x[2]); t2=self.add(x[1],x[3]); t3=self.sub(x[1],x[3])
        self.rel(*x)
        y0=self.add(t0,t2); y2=self.sub(t0,t2)
        if sign<0:
            y1=self.add_mi(t1,t3,+1); y3=self.add_mi(t1,t3,-1)
        else:
            y1=self.add_mi(t1,t3,-1); y3=self.add_mi(t1,t3,+1)
        self.rel(t0,t1,t2,t3)
        return [y0,y1,y2,y3]
    def mul_w8(self, x, k, sign):
        a=self.a; d=self.new(); h='0x3f3504f3'
        s=self.new()
        a(f'v_add_f32 v{s.re}, v{x.re}, v{x.im}'); a(f'v_sub_f32 v{s.im}, v{x.im}, v{x.re}')
        if sign<0:
            if k==1:
                a(f'v_mul_f32 v{d.re}, {h}, v{s.re}'); a(f'v_mul_f32 v{d.im}, {h}, v{s.im}')
            else:
                a(f'v_mul_f32 v{d.re}, {h}, v{s.im}'); a(f'v_mul_f32 v{d.im}, 0xbf3504f3, v{s.re}')
        else:
            if k==1:
                a(f'v_mul_f32 v{d.re}, 0xbf3504f3, v{s.im}'); a(f'v_mul_f32 v{d.im}, {h}, v{s.re}')
            else:
                a(f'v_mul_f32 v{d.re}, 0xbf3504f3, v{s.re}'); a(f'v_mul_f32 v{d.im}, 0xbf3504f3, v{s.im}')
        self.rel(s, x)
        return d
    def mul_mi(self, x, sign):
        a=self.a; d=self.new()
        if sign<0:
            a(f'v_mov_b32 v{d.re}, v{x.im}'); a(f'v_sub_f32 v{d.im}, 0, v{x.re}')
        else:
            a(f'v_sub_f32 v{d.re}, 0, v{x.im}'); a(f'v_mov_b32 v{d.im}, v{x.re}')
        self.rel(x); return d
    def dft8(self, x, sign):
        u=[None]*4; v=[None]*4
        for i in range(4):
            u[i]=self.add(x[i],x[i+4]); v[i]=self.sub(x[i],x[i+4])
        self.rel(*x)
        v[1]=self.mul_w8(v[1],1,sign); v[2]=self.mul_mi(v[2],sign); v[3]=self.mul_w8(v[3],3,sign)
        ue=self.dft4(u,sign); vo=self.dft4(v,sign)
        return [ue[0],vo[0],ue[1],vo[1],ue[2],vo[2],ue[3],vo[3]]
    def cmul(self, x, wr, wi, conj=False):
        a=self.a; d=self.new()
        a(f'v_mul_f32 v{d.re}, v{x.re}, v{wr}')
        a(f'v_mul_f32 v{d.im}, v{x.im}, v{wr}')
        if not conj:
            a(f'v_fma_f32 v{d.re}, -v{x.im}, v{wi}, v{d.re}')
            a(f'v_fma_f32 v{d.im}, v{x.re}, v{wi}, v{d.im}')
        else:
            a(f'v_fma_f32 v{d.re}, v{x.im}, v{wi}, v{d.re}')
            a(f'v_fma_f32 v{d.im}, -v{x.re}, v{wi}, v{d.im}')
        self.rel(x); return d
    def twiddle(self, frac_reg):
        a=self.a; c=self.p.get(); s=self.p.get()
        a(f'v_cos_f32 v{c}, v{frac_reg}')
        a(f'v_sin_f32 v{s}, v{frac_reg}')
        a(f'v_sub_f32 v{s}, 0, v{s}')
        return c, s
```

```python
from gen_common import *

LOG2E = '0x3fb8aa3b'
def silu_bf16(a, d, x, t0):
    round_bf16(a, x, x)
    a(f'v_mul_f32 v{t0}, 0xbfb8aa3b, v{x}')
    a(f'v_exp_f32 v{t0}, v{t0}')
    a(f'v_add_f32 v{t0}, 1.0, v{t0}')
    a(f'v_rcp_f32 v{t0}, v{t0}')
    a(f'v_mul_f32 v{d}, v{x}, v{t0}')
    a(f'v_cvt_pk_bf16_f32 v{d}, v{d}, v{d}')

def gemm1_role(a, wg0):
    PA=144; PB=320; LDS_A=0; LDS_B=128*PA
    a('s_load_dwordx2 s[4:5], s[0:1], 0')
    a('s_load_dwordx2 s[6:7], s[0:1], 32')
    a('s_load_dwordx2 s[10:11], s[0:1], 64')
    a(f's_sub_u32 s28, s2, {wg0}')
    a('s_mul_hi_u32 s29, s28, 0x1745d175')
    a('s_mul_i32 s30, s29, 11')
    a('s_sub_u32 s30, s28, s30')
    a('s_waitcnt lgkmcnt(0)')
    srd(a,12,4,2048*512*2); srd(a,16,6,512*1376*2); srd(a,24,10,WS_SIZE)
    X0=40
    a('v_lshrrev_b32 v2, 2, v0')
    a('v_and_b32 v3, 3, v0')
    a('s_lshl_b32 s31, s29, 17')
    a('v_lshlrev_b32 v4, 10, v2')
    a('v_lshl_add_u32 v4, v3, 5, v4')
    a('v_add_u32 v4, s31, v4')
    for it in range(8):
        for hh in range(2):
            r=X0+it*8+hh*4
            a(f'buffer_load_dwordx4 v[{r}:{r+3}], v4, s[12:15], 0 offen offset:{it*128+hh*16}')
    a('v_lshrrev_b32 v5, 3, v0')
    a('v_and_b32 v6, 7, v0')
    a('s_mov_b32 s33, 2752')
    a('v_mul_lo_u32 v7, v5, s33')
    a('v_lshl_add_u32 v7, v6, 5, v7')
    a('s_lshl_b32 s34, s30, 8')
    a('v_add_u32 v7, s34, v7')
    B0=104
    a(f'buffer_load_dwordx4 v[{B0}:{B0+3}], v7, s[16:19], 0 offen')
    a(f'buffer_load_dwordx4 v[{B0+4}:{B0+7}], v7, s[16:19], 0 offen offset:16')
    a(f'v_mul_u32_u24 v8, {PA}, v2')
    a('v_lshl_add_u32 v8, v3, 5, v8')
    a(f'v_mul_u32_u24 v9, {PB}, v5')
    a('v_lshl_add_u32 v9, v6, 5, v9')
    a(f'v_add_u32 v9, {LDS_B}, v9')
    a('v_and_b32 v10, 63, v0')
    a('v_lshrrev_b32 v11, 6, v0')
    a('v_and_b32 v12, 3, v11')
    a('v_lshrrev_b32 v13, 2, v11')
    a('v_and_b32 v14, 31, v10')
    a('v_lshl_add_u32 v14, v12, 5, v14')
    a(f'v_mul_u32_u24 v14, {PA}, v14')
    a('v_lshrrev_b32 v15, 5, v10')
    a('v_lshl_add_u32 v14, v15, 4, v14')
    a('v_lshlrev_b32 v15, 3, v15')
    a('v_bfe_u32 v16, v10, 2, 2')
    a('v_add_u32 v15, v15, v16')
    a(f'v_mul_u32_u24 v15, {PB}, v15')
    a('v_bfe_u32 v16, v10, 4, 1')
    a('v_lshlrev_b32 v16, 5, v16')
    a('v_and_b32 v17, 3, v10')
    a('v_lshl_add_u32 v16, v17, 3, v16')
    a('v_lshl_add_u32 v16, v13, 7, v16')
    a('v_add_u32 v15, v15, v16')
    a(f'v_add_u32 v15, {LDS_B}, v15')
    A0=112
    for i in range(32): a(f'v_mov_b32 v{A0+i}, 0')
    a('s_waitcnt vmcnt(2)')
    a('v_mov_b32 v18, 0'); a('v_mov_b32 v19, 0')
    for r in range(X0, X0+64):
        a(f'v_lshlrev_b32 v20, 16, v{r}'); a(f'v_and_b32 v21, 0xffff0000, v{r}')
        a('v_add_f32 v18, v18, v20'); a('v_add_f32 v19, v19, v21')
    a('v_add_f32 v18, v18, v19')
    a('v_add_f32_dpp v18, v18, v18 quad_perm:[1,0,3,2] row_mask:0xf bank_mask:0xf')
    a('v_add_f32_dpp v18, v18, v18 quad_perm:[2,3,0,1] row_mask:0xf bank_mask:0xf')
    a('v_mul_f32 v18, 0x3b000000, v18')
    a('v_mov_b32 v19, 0'); a('v_mov_b32 v22, 0')
    for r in range(X0, X0+64):
        a(f'v_lshlrev_b32 v20, 16, v{r}'); a(f'v_and_b32 v21, 0xffff0000, v{r}')
        a('v_sub_f32 v20, v20, v18'); a('v_sub_f32 v21, v21, v18')
        a('v_fma_f32 v19, v20, v20, v19'); a('v_fma_f32 v22, v21, v21, v22')
    a('v_add_f32 v19, v19, v22')
    a('v_add_f32_dpp v19, v19, v19 quad_perm:[1,0,3,2] row_mask:0xf bank_mask:0xf')
    a('v_add_f32_dpp v19, v19, v19 quad_perm:[2,3,0,1] row_mask:0xf bank_mask:0xf')
    a('v_mul_f32 v19, 0x3b000000, v19')
    round_bf16(a,18,18); round_bf16(a,19,19)
    a('v_add_f32 v19, 0x3727c5ac, v19')
    round_bf16(a,19,19)
    a('v_sqrt_f32 v19, v19')
    round_bf16(a,19,19)
    a('v_rcp_f32 v19, v19')
    for it in range(8):
        for r in range(X0+it*8, X0+it*8+8):
            a(f'v_lshlrev_b32 v20, 16, v{r}'); a(f'v_and_b32 v21, 0xffff0000, v{r}')
            a('v_sub_f32 v20, v20, v18'); a('v_sub_f32 v21, v21, v18')
            a('v_cvt_pk_bf16_f32 v22, v20, v21')
            a('v_lshlrev_b32 v20, 16, v22'); a('v_and_b32 v21, 0xffff0000, v22')
            a('v_mul_f32 v20, v20, v19'); a('v_mul_f32 v21, v21, v19')
            a(f'v_cvt_pk_bf16_f32 v{r}, v20, v21')
        a('s_waitcnt vmcnt(0)')
        a('s_barrier')
        r=X0+it*8
        a(f'ds_write_b128 v8, v[{r}:{r+3}]'); a(f'ds_write_b128 v8, v[{r+4}:{r+7}] offset:16')
        a(f'ds_write_b128 v9, v[{B0}:{B0+3}]'); a(f'ds_write_b128 v9, v[{B0+4}:{B0+7}] offset:16')
        if it<7:
            a(f'v_add_u32 v7, {64*2752}, v7')
            a(f'buffer_load_dwordx4 v[{B0}:{B0+3}], v7, s[16:19], 0 offen')
            a(f'buffer_load_dwordx4 v[{B0+4}:{B0+7}], v7, s[16:19], 0 offen offset:16')
        a('s_waitcnt lgkmcnt(0)')
        a('s_barrier')
        for kk in range(4):
            a(f'ds_read_b128 v[24:27], v14 offset:{kk*32}')
            for nb in range(2):
                a(f'ds_read_b64_tr_b16 v[{28+nb*4}:{29+nb*4}], v15 offset:{kk*16*PB+nb*64}')
                a(f'ds_read_b64_tr_b16 v[{30+nb*4}:{31+nb*4}], v15 offset:{(kk*16+4)*PB+nb*64}')
            a('s_waitcnt lgkmcnt(0)')
            for nb in range(2):
                a(f'v_mfma_f32_32x32x16_bf16 v[{A0+16*nb}:{A0+16*nb+15}], v[24:27], v[{28+nb*4}:{31+nb*4}], v[{A0+16*nb}:{A0+16*nb+15}]')
    a('s_nop 15'); a('s_nop 7')
    a('v_lshrrev_b32 v2, 5, v10')
    a('v_lshlrev_b32 v2, 2, v2')
    a('v_lshl_add_u32 v2, v12, 5, v2')
    a('s_lshl_b32 s31, s29, 7')
    a('v_add_u32 v2, s31, v2')
    a('v_mul_lo_u32 v2, v2, s33')
    a('v_and_b32 v3, 31, v10')
    a('v_lshl_add_u32 v3, v13, 6, v3')
    a('s_lshl_b32 s34, s30, 7')
    a('v_add_u32 v3, s34, v3')
    for nb in range(2):
        a(f'v_add_u32 v4, {32*nb}, v3')
        a('v_cmp_gt_u32 vcc, 1376, v4')
        a('v_lshl_add_u32 v4, v4, 1, v2')
        a(f'v_add_u32 v4, {WS_H}, v4')
        a('s_and_saveexec_b64 s[36:37], vcc')
        for i in range(16):
            r=A0+16*nb+i
            silu_bf16(a, r, r, 20)
            off=((i&3)+8*(i>>2))*2752
            a(f's_mov_b32 s38, {off}')
            a(f'buffer_store_short v{r}, v4, s[24:27], s38 offen')
        a('s_mov_b64 exec, s[36:37]')
    return LDS_B+64*PB

def gemm2_role(a, wg0):
    PA=80; PB=192; LDS_A=0; LDS_B=64*PA
    a('s_load_dwordx2 s[6:7], s[0:1], 40')
    a('s_load_dwordx2 s[10:11], s[0:1], 64')
    a(f's_sub_u32 s28, s2, {wg0}')
    a('s_lshr_b32 s29, s28, 3')
    a('s_and_b32 s30, s28, 7')
    a('s_waitcnt lgkmcnt(0)')
    srd(a,16,6,1376*512*2); srd(a,24,10,WS_SIZE)
    a('v_lshrrev_b32 v2, 2, v0')
    a('v_and_b32 v3, 3, v0')
    a('s_lshl_b32 s31, s29, 6')
    a('v_add_u32 v4, s31, v2')
    a('s_mov_b32 s33, 2752')
    a('v_mul_lo_u32 v4, v4, s33')
    a('v_lshl_add_u32 v4, v3, 4, v4')
    a(f'v_add_u32 v4, {WS_H}, v4')
    a('v_lshrrev_b32 v5, 3, v0')
    a('v_and_b32 v6, 7, v0')
    a('v_lshlrev_b32 v7, 10, v5')
    a('v_lshl_add_u32 v7, v6, 4, v7')
    a('s_lshl_b32 s34, s30, 7')
    a('v_add_u32 v7, s34, v7')
    a(f'v_mul_u32_u24 v8, {PA}, v2')
    a('v_lshl_add_u32 v8, v3, 4, v8')
    a(f'v_mul_u32_u24 v9, {PB}, v5')
    a('v_lshl_add_u32 v9, v6, 4, v9')
    a(f'v_add_u32 v9, {LDS_B}, v9')
    a('v_and_b32 v10, 63, v0')
    a('v_lshrrev_b32 v11, 6, v0')
    a('v_and_b32 v12, 1, v11')
    a('v_lshrrev_b32 v13, 1, v11')
    a('v_and_b32 v14, 31, v10')
    a('v_lshl_add_u32 v14, v12, 5, v14')
    a(f'v_mul_u32_u24 v14, {PA}, v14')
    a('v_lshrrev_b32 v15, 5, v10')
    a('v_lshl_add_u32 v14, v15, 4, v14')
    a('v_lshlrev_b32 v15, 3, v15')
    a('v_bfe_u32 v16, v10, 2, 2')
    a('v_add_u32 v15, v15, v16')
    a(f'v_mul_u32_u24 v15, {PB}, v15')
    a('v_bfe_u32 v16, v10, 4, 1')
    a('v_lshlrev_b32 v16, 5, v16')
    a('v_and_b32 v17, 3, v10')
    a('v_lshl_add_u32 v16, v17, 3, v16')
    a('v_lshl_add_u32 v16, v13, 6, v16')
    a('v_add_u32 v15, v15, v16')
    a(f'v_add_u32 v15, {LDS_B}, v15')
    A0=48
    for i in range(16): a(f'v_mov_b32 v{A0+i}, 0')
    R=[32,40]
    def gload(rs, it_reg_off):
        a(f'buffer_load_dwordx4 v[{rs}:{rs+3}], v4, s[24:27], s44 offen')
        a(f'buffer_load_dwordx4 v[{rs+4}:{rs+7}], v7, s[16:19], s45 offen')
    a('s_mov_b32 s44, 0'); a('s_mov_b32 s45, 0')
    gload(R[0],0)
    a('s_mov_b32 s44, 64'); a(f's_mov_b32 s45, {32*1024}')
    gload(R[1],0)
    a('s_mov_b32 s46, 0')
    a.label('L_g2_loop')
    for half in range(2):
        rs=R[half]
        a('s_waitcnt vmcnt(2)')
        a('s_barrier')
        a(f'ds_write_b128 v8, v[{rs}:{rs+3}]')
        a(f'ds_write_b128 v9, v[{rs+4}:{rs+7}]')
        a('s_add_u32 s44, s44, 64'); a(f's_add_u32 s45, s45, {32*1024}')
        gload(rs,0)
        a('s_waitcnt lgkmcnt(0)')
        a('s_barrier')
        for kk in range(2):
            a(f'ds_read_b128 v[24:27], v14 offset:{kk*32}')
            a(f'ds_read_b64_tr_b16 v[28:29], v15 offset:{kk*16*PB}')
            a(f'ds_read_b64_tr_b16 v[30:31], v15 offset:{(kk*16+4)*PB}')
            a('s_waitcnt lgkmcnt(0)')
            a(f'v_mfma_f32_32x32x16_bf16 v[{A0}:{A0+15}], v[24:27], v[28:31], v[{A0}:{A0+15}]')
        if half==0:
            a('s_add_u32 s46, s46, 1')
            a('s_cmp_eq_u32 s46, 22')
            a('s_cbranch_scc1 L_g2_done')
    a('s_branch L_g2_loop')
    a.label('L_g2_done')
    a('s_waitcnt vmcnt(0)')
    a('s_nop 15'); a('s_nop 7')
    a('s_mov_b32 s48, 8192'); a('s_mov_b32 s49, 16384'); a('s_mov_b32 s50, 24576')
    a('v_lshrrev_b32 v2, 5, v10')
    a('v_lshlrev_b32 v2, 2, v2')
    a('v_lshl_add_u32 v2, v12, 5, v2')
    a('v_add_u32 v2, s31, v2')
    a('v_lshlrev_b32 v2, 10, v2')
    a('v_and_b32 v3, 31, v10')
    a('v_lshl_add_u32 v3, v13, 5, v3')
    a('s_lshl_b32 s34, s30, 6')
    a('v_add_u32 v3, s34, v3')
    a('v_lshl_add_u32 v4, v3, 1, v2')
    a(f'v_add_u32 v4, {WS_G}, v4')
    for i in range(16):
        r=A0+i
        silu_bf16(a, r, r, 20)
        a(f'buffer_store_short v{r}, v4, s[24:27], 0 offen offset:{((i&3)+8*(i>>2))*1024 % 4096}' if ((i&3)+8*(i>>2))*1024 < 4096 else f'buffer_store_short v{r}, v4, s[24:27], s{47+(i>>2)} offen offset:{(i&3)*1024}')
    return LDS_B+32*PB
```

```python
import sys
from asmlib import Asm
from fftlib import Pool, C, FFT

WS_X1 = 0
WS_W  = 8<<20
WS_H  = 16<<20
WS_G  = 24<<20
WS_SIZE = 268435456

def srd(a, s, ptr, size):
    a(f's_mov_b32 s{s}, s{ptr}')
    a(f's_and_b32 s{s+1}, s{ptr+1}, 0xffff')
    a(f's_mov_b32 s{s+2}, {size}')
    a(f's_mov_b32 s{s+3}, 0x00020000')

def dpp_reduce_sum(a, v, sdst):
    for m in ('row_shr:1','row_shr:2','row_shr:4','row_shr:8'):
        a(f'v_add_f32_dpp v{v}, v{v}, v{v} {m} row_mask:0xf bank_mask:0xf bound_ctrl:0')
    a(f'v_add_f32_dpp v{v}, v{v}, v{v} row_bcast:15 row_mask:0xa bank_mask:0xf')
    a(f'v_add_f32_dpp v{v}, v{v}, v{v} row_bcast:31 row_mask:0xc bank_mask:0xf')
    a(f'v_readlane_b32 s{sdst}, v{v}, 63')

def round_bf16(a, d, s):
    a(f'v_cvt_pk_bf16_f32 v{d}, v{s}, v{s}')
    a(f'v_lshlrev_b32 v{d}, 16, v{d}')

def pr(c): return f'v[{c.re}:{c.im}]'
```

```python
import sys
from gen_common import *
from gemm import gemm1_role, gemm2_role

def k1_roleA(a):
    P = Pool(8, 127); F = FFT(a, P)
    LDS_T = 16384; PX = 72; LDS_W = (LDS_T + 257*PX + 15)//16*16
    a('s_load_dwordx2 s[4:5], s[0:1], 0')
    a('s_load_dwordx2 s[6:7], s[0:1], 8')
    a('s_load_dwordx2 s[8:9], s[0:1], 16')
    a('s_load_dwordx2 s[10:11], s[0:1], 64')
    vL=1
    a(f'v_and_b32 v{vL}, 63, v0')
    a('v_lshrrev_b32 v2, 6, v0')
    a('v_readfirstlane_b32 s28, v2')
    a('s_lshl_b32 s29, s2, 3')
    a('s_add_u32 s29, s29, s28')
    a('s_waitcnt lgkmcnt(0)')
    srd(a,12,4,2048*512*2); srd(a,16,6,2048*257*2); srd(a,20,8,2048*257*2); srd(a,24,10,WS_SIZE)
    a('s_lshl_b32 s30, s29, 10')
    a(f'v_lshlrev_b32 v2, 2, v{vL}')
    a('v_add_u32 v2, s30, v2')
    xr=[P.get() for _ in range(4)]
    for t in range(4): a(f'buffer_load_dword v{xr[t]}, v2, s[12:15], 0 offen offset:{256*t}')
    a('s_mul_i32 s30, s29, 514')
    a(f'v_lshlrev_b32 v3, 1, v{vL}')
    a('v_add_u32 v3, s30, v3')
    a('v_mov_b32 v4, s30')
    wr=[P.get() for _ in range(5)]; wi=[P.get() for _ in range(5)]
    for t in range(4): a(f'buffer_load_ushort v{wr[t]}, v3, s[16:19], 0 offen offset:{128*t}')
    a(f'buffer_load_ushort v{wr[4]}, v4, s[16:19], 0 offen offset:512')
    for t in range(4): a(f'buffer_load_ushort v{wi[t]}, v3, s[20:23], 0 offen offset:{128*t}')
    a(f'buffer_load_ushort v{wi[4]}, v4, s[20:23], 0 offen offset:512')
    a('s_lshl_b32 s31, s28, 11')
    a('s_waitcnt vmcnt(10)')
    Z=[F.new() for _ in range(4)]
    for t in range(4):
        a(f'v_lshlrev_b32 v{Z[t].re}, 16, v{xr[t]}')
        a(f'v_and_b32 v{Z[t].im}, 0xffff0000, v{xr[t]}')
    P.put(*xr)
    s=P.get(); s2=P.get()
    a(f'v_add_f32 v{s}, v{Z[0].re}, v{Z[0].im}')
    for t in range(1,4):
        a(f'v_add_f32 v{s}, v{s}, v{Z[t].re}'); a(f'v_add_f32 v{s}, v{s}, v{Z[t].im}')
    dpp_reduce_sum(a, s, 32)
    a('v_mov_b32 v5, s32')
    a('v_mul_f32 v5, 0x3b000000, v5')
    a(f'v_mov_b32 v{s2}, 0')
    for t in range(4):
        for r in (Z[t].re, Z[t].im):
            a(f'v_sub_f32 v{s}, v{r}, v5')
            a(f'v_fma_f32 v{s2}, v{s}, v{s}, v{s2}')
    dpp_reduce_sum(a, s2, 33)
    a('v_mov_b32 v6, s33')
    a('v_mul_f32 v6, 0x3b000000, v6')
    round_bf16(a,5,5); round_bf16(a,6,6)
    a('v_add_f32 v6, 0x3727c5ac, v6')
    round_bf16(a,6,6)
    a('v_sqrt_f32 v6, v6')
    round_bf16(a,6,6)
    a('v_rcp_f32 v6, v6')
    for t in range(4):
        for r in (Z[t].re, Z[t].im):
            a(f'v_sub_f32 v{r}, v{r}, v5')
            round_bf16(a,r,r)
            a(f'v_mul_f32 v{r}, v{r}, v6')
            round_bf16(a,r,r)
    P.put(s,s2)
    a('s_waitcnt vmcnt(0)')
    for t in range(5):
        a(f'v_lshl_or_b32 v{wr[t]}, v{wi[t]}, 16, v{wr[t]}')
    P.put(*wi)
    a(f'v_lshlrev_b32 v2, 5, v{vL}')
    a('s_lshl_b32 s34, s28, 2')
    a(f's_add_u32 s34, s34, {LDS_W}')
    a('v_add_u32 v2, s34, v2')
    for t in range(4): a(f'ds_write_b32 v2, v{wr[t]} offset:{2048*t}')
    a('v_mov_b32 v3, s34')
    a(f'ds_write_b32 v3, v{wr[4]} offset:{256*32}')
    P.put(*wr)
    vRd=P.get()
    a(f'v_lshlrev_b32 v{vRd}, 3, v{vL}')
    a(f'v_add_u32 v{vRd}, s31, v{vRd}')
    for st in range(4):
        Ns=4**st
        if st>0:
            kf=P.get(); fr=P.get()
            a(f'v_and_b32 v{kf}, {Ns-1}, v{vL}')
            a(f'v_cvt_f32_u32 v{kf}, v{kf}')
            for t in range(1,4):
                a(f'v_mul_f32 v{fr}, {float(t)/(4*Ns)!r}, v{kf}')
                c,sn=F.twiddle(fr)
                Z[t]=F.cmul(Z[t],c,sn); P.put(c,sn)
            P.put(kf,fr)
        Z=F.dft4(Z,-1)
        if st<3:
            w=P.get()
            a(f'v_and_b32 v{w}, {Ns-1}, v{vL}')
            a(f'v_lshrrev_b32 v2, {2*st}, v{vL}')
            a(f'v_lshl_add_u32 v{w}, v2, {2*st+2}, v{w}')
            a(f'v_lshlrev_b32 v{w}, 3, v{w}')
            a(f'v_add_u32 v{w}, s31, v{w}')
            for t in range(4): a(f'ds_write_b64 v{w}, {pr(Z[t])} offset:{8*Ns*t}')
            P.put(w)
            a('s_waitcnt lgkmcnt(0)')
            for t in range(4): a(f'ds_read_b64 {pr(Z[t])}, v{vRd} offset:{512*t}')
            a('s_waitcnt lgkmcnt(0)')
    for t in range(4): a(f'ds_write_b64 v{vRd}, {pr(Z[t])} offset:{512*t}')
    a('s_waitcnt lgkmcnt(0)')
    M=[F.new() for _ in range(4)]
    for t in range(4):
        a(f'v_sub_u32 v2, {256-64*t}, v{vL}')
        a('v_and_b32 v2, 255, v2')
        a('v_lshlrev_b32 v2, 3, v2')
        a('v_add_u32 v2, s31, v2')
        a(f'ds_read_b64 {pr(M[t])}, v2')
    a('s_lshl_b32 s34, s28, 3')
    a(f's_add_u32 s34, s34, {LDS_T}')
    vT=P.get(); kf=P.get()
    a(f'v_mul_u32_u24 v{vT}, {PX}, v{vL}')
    a(f'v_add_u32 v{vT}, s34, v{vT}')
    a(f'v_cvt_f32_u32 v{kf}, v{vL}')
    a('s_waitcnt lgkmcnt(0)')
    for t in range(4):
        fr=P.get(); c=P.get(); sn=P.get(); X=F.new()
        a(f'v_add_f32 v{fr}, {float(64*t)}, v{kf}')
        a(f'v_mul_f32 v{fr}, 0x3b000000, v{fr}')
        a(f'v_cos_f32 v{c}, v{fr}'); a(f'v_sin_f32 v{sn}, v{fr}')
        er=P.get(); ei=P.get(); orr=P.get(); oi=P.get()
        a(f'v_add_f32 v{er}, v{Z[t].re}, v{M[t].re}')
        a(f'v_sub_f32 v{ei}, v{Z[t].im}, v{M[t].im}')
        a(f'v_sub_f32 v{orr}, v{Z[t].re}, v{M[t].re}')
        a(f'v_add_f32 v{oi}, v{Z[t].im}, v{M[t].im}')
        a(f'v_fma_f32 v{X.re}, v{c}, v{oi}, v{er}')
        a(f'v_fma_f32 v{X.re}, -v{sn}, v{orr}, v{X.re}')
        a(f'v_fma_f32 v{X.im}, -v{c}, v{orr}, v{ei}')
        a(f'v_fma_f32 v{X.im}, -v{sn}, v{oi}, v{X.im}')
        a(f'ds_write_b64 v{vT}, {pr(X)} offset:{64*t*PX}')
        if t==0:
            a(f'v_sub_f32 v6, v{Z[0].re}, v{Z[0].im}')
            a('v_add_f32 v6, v6, v6')
            a('v_mov_b32 v7, 0')
            a('v_mov_b32 v2, s34')
            a('s_mov_b64 s[36:37], exec')
            a('s_mov_b64 exec, 1')
            a(f'ds_write_b64 v2, v[6:7] offset:{256*PX}')
            a('s_mov_b64 exec, s[36:37]')
        P.put(fr,c,sn,er,ei,orr,oi); F.rel(X)
    a('s_waitcnt lgkmcnt(0)')
    a('s_barrier')
    a('v_lshrrev_b32 v2, 2, v0')
    a('v_and_b32 v3, 3, v0')
    a(f'v_mul_u32_u24 v4, {PX}, v2')
    a('v_lshlrev_b32 v5, 4, v3')
    a('v_add_u32 v4, v4, v5')
    a(f'v_add_u32 v4, {LDS_T}, v4')
    a('v_lshlrev_b32 v6, 14, v2')
    a('s_lshl_b32 s35, s2, 6')
    a('v_add3_u32 v6, v6, v5, s35')
    for p in range(3):
        if p==2:
            a('v_cmp_gt_u32 vcc, 4, v0')
            a('s_and_saveexec_b64 s[36:37], vcc')
        a(f'ds_read2_b64 v[8:11], v4 offset0:{(128*p*PX//8)%256} offset1:{(128*p*PX//8)%256+1}') if 128*p*PX//8 < 255 else None
        if 128*p*PX//8 >= 255:
            a(f'v_add_u32 v7, {128*p*PX}, v4')
            a('ds_read2_b64 v[8:11], v7 offset0:0 offset1:1')
        a('s_waitcnt lgkmcnt(0)')
        a('buffer_store_dwordx4 v[8:11], v6, s[24:27], 0 offen')
        if p<2: a('v_add_u32 v6, 0x200000, v6')
    a('s_mov_b64 exec, s[36:37]')
    a('v_lshrrev_b32 v2, 1, v0')
    a('v_and_b32 v3, 1, v0')
    a('v_lshlrev_b32 v4, 5, v2')
    a('v_lshlrev_b32 v5, 4, v3')
    a('v_add_u32 v4, v4, v5')
    a(f'v_add_u32 v4, {LDS_W}, v4')
    a('v_lshlrev_b32 v6, 13, v2')
    a('s_lshl_b32 s35, s2, 5')
    a(f's_add_u32 s35, s35, {WS_W}')
    a('v_add3_u32 v6, v6, v5, s35')
    for p in range(2):
        if p==1:
            a('v_cmp_gt_u32 vcc, 2, v0')
            a('s_and_saveexec_b64 s[36:37], vcc')
        a(f'ds_read_b128 v[12:15], v4 offset:{256*32*p}')
        a('s_waitcnt lgkmcnt(0)')
        a('buffer_store_dwordx4 v[12:15], v6, s[24:27], 0 offen')
        if p<1: a('v_add_u32 v6, 0x200000, v6')
    a('s_mov_b64 exec, s[36:37]')
    return LDS_W + 257*32, P.hi_water

def k2_roleA(a):
    P = Pool(8, 127); F = FFT(a, P)
    a('s_load_dwordx2 s[10:11], s[0:1], 64')
    a('s_waitcnt lgkmcnt(0)')
    srd(a,24,10,WS_SIZE)
    a('s_lshl_b32 s30, s2, 14')
    a('v_lshlrev_b32 v2, 3, v0')
    a('v_add_u32 v2, s30, v2')
    X=[F.new() for _ in range(8)]
    a('s_mov_b32 s40, 0'); a('s_mov_b32 s41, 4096'); a('s_mov_b32 s42, 8192'); a('s_mov_b32 s43, 12288')
    for i in range(8): a(f'buffer_load_dwordx2 {pr(X[i])}, v2, s[24:27], s{40+i//2} offen offset:{2048*(i%2)}')
    Wr=[P.get() for _ in range(8)]
    a('s_lshl_b32 s31, s2, 13')
    a(f's_add_u32 s31, s31, {WS_W}')
    for h in range(2):
        a('v_lshrrev_b32 v3, 6, v0')
        if h: a('v_add_u32 v3, 4, v3')
        a('v_bfe_u32 v4, v0, 3, 3')
        a('v_lshl_add_u32 v3, v4, 3, v3')
        a('v_and_b32 v4, 7, v0')
        a('v_lshl_add_u32 v3, v4, 6, v3')
        a('v_lshlrev_b32 v3, 2, v3')
        a('v_add_u32 v3, s31, v3')
        for d in range(4): a(f'buffer_load_dword v{Wr[4*h+d]}, v3, s[24:27], s{40+d//2} offen offset:{2048*(d%2)}')
    tf=P.get(); fr=P.get()
    twA=[];twB=[];twC=[]
    a(f'v_cvt_f32_u32 v{tf}, v0')
    for i in range(1,8):
        a(f'v_mul_f32 v{fr}, {float(i)/2048!r}, v{tf}')
        twA.append(F.twiddle(fr))
    a(f'v_and_b32 v{tf}, 31, v0'); a(f'v_cvt_f32_u32 v{tf}, v{tf}')
    for i in range(1,8):
        a(f'v_mul_f32 v{fr}, {float(i)/256!r}, v{tf}')
        twB.append(F.twiddle(fr))
    a(f'v_and_b32 v{tf}, 3, v0'); a(f'v_cvt_f32_u32 v{tf}, v{tf}')
    for i in range(1,8):
        a(f'v_mul_f32 v{fr}, {float(i)/32!r}, v{tf}')
        twC.append(F.twiddle(fr))
    P.put(tf,fr)
    vA=P.get(); vB=P.get(); vC=P.get(); vD=[P.get(),P.get()]
    a('v_lshrrev_b32 v3, 5, v0'); a('v_mul_u32_u24 v3, 36, v3'); a('v_and_b32 v4, 31, v0'); a('v_add_u32 v3, v3, v4')
    a(f'v_lshlrev_b32 v{vA}, 3, v3')
    a('v_lshrrev_b32 v3, 5, v0'); a('v_mul_u32_u24 v3, 288, v3'); a('v_add_u32 v3, v3, v4')
    a(f'v_lshlrev_b32 v{vB}, 3, v3')
    a('v_lshrrev_b32 v3, 5, v0'); a('v_mul_u32_u24 v3, 288, v3'); a('v_bfe_u32 v4, v0, 2, 3'); a('v_mul_u32_u24 v4, 36, v4'); a('v_add_u32 v3, v3, v4'); a('v_and_b32 v4, 3, v0'); a('v_add_u32 v3, v3, v4')
    a(f'v_lshlrev_b32 v{vC}, 3, v3')
    a('v_lshrrev_b32 v3, 6, v0'); a('v_mul_u32_u24 v3, 288, v3'); a('v_bfe_u32 v4, v0, 3, 3'); a('v_mul_u32_u24 v4, 36, v4'); a('v_add_u32 v3, v3, v4'); a('v_and_b32 v4, 7, v0'); a('v_lshl_add_u32 v3, v4, 2, v3')
    a(f'v_lshlrev_b32 v{vD[0]}, 3, v3')
    a(f'v_add_u32 v{vD[1]}, {4*288*8}, v{vD[0]}')
    a('s_waitcnt vmcnt(8)')
    Y=F.dft8(X,-1)
    for i in range(1,8): Y[i]=F.cmul(Y[i],*twA[i-1])
    for i in range(8): a(f'ds_write_b64 v{vA}, {pr(Y[i])} offset:{288*8*i}')
    F.rel(*Y)
    a('s_waitcnt lgkmcnt(0)'); a('s_barrier')
    def stage(vaddr, stride, tw):
        X=[F.new() for _ in range(8)]
        for i in range(8): a(f'ds_read_b64 {pr(X[i])}, v{vaddr} offset:{stride*8*i}')
        a('s_waitcnt lgkmcnt(0)')
        Y=F.dft8(X,-1)
        for i in range(1,8): Y[i]=F.cmul(Y[i],*tw[i-1])
        for i in range(8): a(f'ds_write_b64 v{vaddr}, {pr(Y[i])} offset:{stride*8*i}')
        F.rel(*Y)
        a('s_waitcnt lgkmcnt(0)'); a('s_barrier')
    stage(vB,36,twB)
    stage(vC,4,twC)
    a('s_waitcnt vmcnt(0)')
    for h in range(2):
        X=[F.new() for _ in range(4)]
        for i in range(4): a(f'ds_read_b64 {pr(X[i])}, v{vD[h]} offset:{8*i}')
        a('s_waitcnt lgkmcnt(0)')
        Y=F.dft4(X,-1)
        for d in range(4):
            w=Wr[4*h+d]; wr_=P.get(); wi_=P.get()
            a(f'v_lshlrev_b32 v{wr_}, 16, v{w}'); a(f'v_and_b32 v{wi_}, 0xffff0000, v{w}')
            a(f'v_mul_f32 v{wr_}, 0x35000000, v{wr_}'); a(f'v_mul_f32 v{wi_}, 0x35000000, v{wi_}')
            Y[d]=F.cmul(Y[d],wr_,wi_); P.put(wr_,wi_)
        Y=F.dft4(Y,+1)
        for i in range(4): a(f'ds_write_b64 v{vD[h]}, {pr(Y[i])} offset:{8*i}')
        F.rel(*Y)
    a('s_waitcnt lgkmcnt(0)'); a('s_barrier')
    def istage(vaddr, stride, tw):
        X=[F.new() for _ in range(8)]
        for i in range(8): a(f'ds_read_b64 {pr(X[i])}, v{vaddr} offset:{stride*8*i}')
        a('s_waitcnt lgkmcnt(0)')
        for i in range(1,8): X[i]=F.cmul(X[i],*tw[i-1],conj=True)
        Y=F.dft8(X,+1)
        return Y
    Y=istage(vC,4,twC)
    for i in range(8): a(f'ds_write_b64 v{vC}, {pr(Y[i])} offset:{4*8*i}')
    F.rel(*Y); a('s_waitcnt lgkmcnt(0)'); a('s_barrier')
    Y=istage(vB,36,twB)
    for i in range(8): a(f'ds_write_b64 v{vB}, {pr(Y[i])} offset:{36*8*i}')
    F.rel(*Y); a('s_waitcnt lgkmcnt(0)'); a('s_barrier')
    Y=istage(vA,288,twA)
    for i in range(8): a(f'buffer_store_dwordx2 {pr(Y[i])}, v2, s[24:27], s{40+i//2} offen offset:{2048*(i%2)}')
    return 8*288*8, P.hi_water

def k3(a, debug_s=False):
    P = Pool(20, 127); F = FFT(a, P)
    PR = 257*8+8
    LDS_R = 16384
    a('s_load_dwordx2 s[4:5], s[0:1], 0')
    a('s_load_dwordx2 s[6:7], s[0:1], 48')
    a('s_load_dwordx2 s[10:11], s[0:1], 64')
    vL=1
    a(f'v_and_b32 v{vL}, 63, v0')
    a('v_lshrrev_b32 v2, 6, v0')
    a('v_readfirstlane_b32 s28, v2')
    a('s_lshl_b32 s29, s2, 3')
    a('s_add_u32 s29, s29, s28')
    a('s_waitcnt lgkmcnt(0)')
    srd(a,12,4,2048*512*2); srd(a,16,6,2048*512*2); srd(a,24,10,WS_SIZE)
    a('v_lshrrev_b32 v2, 2, v0')
    a('v_and_b32 v3, 3, v0')
    a('v_lshlrev_b32 v6, 14, v2')
    a('v_lshlrev_b32 v5, 4, v3')
    a('s_lshl_b32 s35, s2, 6')
    a('v_add3_u32 v6, v6, v5, s35')
    a(f'v_mul_u32_u24 v4, {2*PR}, v3')
    a(f'v_lshl_add_u32 v4, v2, 3, v4')
    a(f'v_add_u32 v4, {LDS_R}, v4')
    g=[8,12,16]
    for p in range(3):
        if p==2:
            a('v_cmp_gt_u32 vcc, 4, v0')
            a('s_and_saveexec_b64 s[36:37], vcc')
        a(f'buffer_load_dwordx4 v[{g[p]}:{g[p]+3}], v6, s[24:27], 0 offen')
        if p<2: a('v_add_u32 v6, 0x200000, v6')
    a('s_mov_b64 exec, s[36:37]')
    a('s_lshl_b32 s30, s29, 10')
    a(f'v_lshlrev_b32 v7, 2, v{vL}')
    a('v_add_u32 v7, s30, v7')
    xr=[P.get() for _ in range(4)]; gr=[P.get() for _ in range(4)]
    for t in range(4): a(f'buffer_load_dword v{xr[t]}, v7, s[12:15], 0 offen offset:{256*t}')
    a(f'v_add_u32 v5, {WS_G}, v7')
    for t in range(4): a(f'buffer_load_dword v{gr[t]}, v5, s[24:27], 0 offen offset:{256*t}')
    a('s_waitcnt vmcnt(8)')
    for p in range(3):
        if p==2:
            a('v_cmp_gt_u32 vcc, 4, v0')
            a('s_and_saveexec_b64 s[36:37], vcc')
        a(f'ds_write_b64 v4, v[{g[p]}:{g[p]+1}] offset:{1024*p}')
        a(f'ds_write_b64 v4, v[{g[p]+2}:{g[p]+3}] offset:{1024*p+PR}')
    a('s_mov_b64 exec, s[36:37]')
    a('s_waitcnt lgkmcnt(0)')
    a('s_barrier')
    a(f's_mul_i32 s31, s28, {PR}')
    a(f's_add_u32 s31, s31, {LDS_R}')
    a('s_lshl_b32 s32, s28, 11')
    Y=[F.new() for _ in range(4)]; M=[F.new() for _ in range(4)]
    a(f'v_lshlrev_b32 v2, 3, v{vL}')
    a('v_add_u32 v2, s31, v2')
    for t in range(4): a(f'ds_read_b64 {pr(Y[t])}, v2 offset:{512*t}')
    for t in range(4):
        a(f'v_sub_u32 v3, {256-64*t}, v{vL}')
        a('v_lshlrev_b32 v3, 3, v3')
        a('v_add_u32 v3, s31, v3')
        a(f'ds_read_b64 {pr(M[t])}, v3')
    kf=P.get()
    a(f'v_cvt_f32_u32 v{kf}, v{vL}')
    a('s_waitcnt lgkmcnt(0)')
    a(f'v_cmp_eq_u32 vcc, 0, v{vL}')
    a(f'v_cndmask_b32 v{Y[0].im}, v{Y[0].im}, 0, vcc')
    a(f'v_cndmask_b32 v{M[0].im}, v{M[0].im}, 0, vcc')
    Z=[]
    for t in range(4):
        fr=P.get(); c=P.get(); sn=P.get()
        a(f'v_add_f32 v{fr}, {float(64*t)}, v{kf}')
        a(f'v_mul_f32 v{fr}, 0x3b000000, v{fr}')
        a(f'v_cos_f32 v{c}, v{fr}'); a(f'v_sin_f32 v{sn}, v{fr}')
        er=P.get(); ei=P.get(); dr=P.get(); di=P.get()
        a(f'v_add_f32 v{er}, v{Y[t].re}, v{M[t].re}')
        a(f'v_sub_f32 v{ei}, v{Y[t].im}, v{M[t].im}')
        a(f'v_sub_f32 v{dr}, v{Y[t].re}, v{M[t].re}')
        a(f'v_add_f32 v{di}, v{Y[t].im}, v{M[t].im}')
        z=F.new()
        a(f'v_fma_f32 v{z.re}, -v{c}, v{di}, v{er}')
        a(f'v_fma_f32 v{z.re}, -v{sn}, v{dr}, v{z.re}')
        a(f'v_fma_f32 v{z.im}, v{c}, v{dr}, v{ei}')
        a(f'v_fma_f32 v{z.im}, -v{sn}, v{di}, v{z.im}')
        Z.append(z); P.put(fr,c,sn,er,ei,dr,di)
    F.rel(*Y); F.rel(*M)
    vRd=P.get()
    a(f'v_lshlrev_b32 v{vRd}, 3, v{vL}')
    a(f'v_add_u32 v{vRd}, s32, v{vRd}')
    for st in range(4):
        Ns=4**st
        if st>0:
            k2=P.get(); fr=P.get()
            a(f'v_and_b32 v{k2}, {Ns-1}, v{vL}')
            a(f'v_cvt_f32_u32 v{k2}, v{k2}')
            for t in range(1,4):
                a(f'v_mul_f32 v{fr}, {float(t)/(4*Ns)!r}, v{k2}')
                c,sn=F.twiddle(fr)
                Z[t]=F.cmul(Z[t],c,sn,conj=True); P.put(c,sn)
            P.put(k2,fr)
        Z=F.dft4(Z,+1)
        if st<3:
            w=P.get()
            a(f'v_and_b32 v{w}, {Ns-1}, v{vL}')
            a(f'v_lshrrev_b32 v2, {2*st}, v{vL}')
            a(f'v_lshl_add_u32 v{w}, v2, {2*st+2}, v{w}')
            a(f'v_lshlrev_b32 v{w}, 3, v{w}')
            a(f'v_add_u32 v{w}, s32, v{w}')
            for t in range(4): a(f'ds_write_b64 v{w}, {pr(Z[t])} offset:{8*Ns*t}')
            P.put(w)
            a('s_waitcnt lgkmcnt(0)')
            for t in range(4): a(f'ds_read_b64 {pr(Z[t])}, v{vRd} offset:{512*t}')
            a('s_waitcnt lgkmcnt(0)')
    a('s_waitcnt vmcnt(0)')
    for t in range(4):
        o=P.get(); t0=P.get(); t1=P.get()
        if debug_s:
            a(f'v_cvt_pk_bf16_f32 v{o}, v{Z[t].re}, v{Z[t].im}')
        else:
            round_bf16(a,Z[t].re,Z[t].re); round_bf16(a,Z[t].im,Z[t].im)
            a(f'v_lshlrev_b32 v{t0}, 16, v{gr[t]}'); a(f'v_and_b32 v{t1}, 0xffff0000, v{gr[t]}')
            a(f'v_mul_f32 v{Z[t].re}, v{Z[t].re}, v{t0}'); a(f'v_mul_f32 v{Z[t].im}, v{Z[t].im}, v{t1}')
            round_bf16(a,Z[t].re,Z[t].re); round_bf16(a,Z[t].im,Z[t].im)
            a(f'v_lshlrev_b32 v{t0}, 16, v{xr[t]}'); a(f'v_and_b32 v{t1}, 0xffff0000, v{xr[t]}')
            a(f'v_add_f32 v{Z[t].re}, v{Z[t].re}, v{t0}'); a(f'v_add_f32 v{Z[t].im}, v{Z[t].im}, v{t1}')
            a(f'v_cvt_pk_bf16_f32 v{o}, v{Z[t].re}, v{Z[t].im}')
        a(f'buffer_store_dword v{o}, v7, s[16:19], 0 offen offset:{256*t}')
        P.put(o,t0,t1)
    return LDS_R + 8*PR, P.hi_water

def kernel(a, name, nwg, body):
    a.raw(f'.globl {name}\n.p2align 8\n.type {name},@function\n{name}:')
    a(f's_cmp_ge_u32 s2, {nwg}')
    a(f's_cbranch_scc1 L_{name}_end')
    r = body(a)
    a.label(f'L_{name}_end')
    a('s_endpgm')
    return r

def desc(name, vgpr):
    return f""".p2align 6
.amdhsa_kernel {name}
  .amdhsa_next_free_vgpr {vgpr}
  .amdhsa_next_free_sgpr 102
  .amdhsa_accum_offset {(vgpr+3)//4*4}
  .amdhsa_group_segment_fixed_size 0
  .amdhsa_kernarg_size 72
  .amdhsa_user_sgpr_count 2
  .amdhsa_user_sgpr_kernarg_segment_ptr 1
  .amdhsa_system_sgpr_workgroup_id_x 1
.end_amdhsa_kernel
"""

def main(out, debug_s=False, nl=3):
    a = Asm()
    def body1(a):
        a('s_cmp_ge_u32 s2, 256'); a('s_cbranch_scc1 L_k1_gemm')
        r=k1_roleA(a)
        a('s_endpgm'); a.label('L_k1_gemm')
        l=gemm1_role(a,256)
        return max(r[0],l), r[1]
    def body2(a):
        a('s_cmp_ge_u32 s2, 257'); a('s_cbranch_scc1 L_k2_gemm')
        r=k2_roleA(a)
        a('s_endpgm'); a.label('L_k2_gemm')
        l=gemm2_role(a,257)
        return max(r[0],l), r[1]
    l1,h1 = kernel(a,'k1_kernel',256+176,body1)
    l2,h2 = kernel(a,'k2_kernel',257+256,body2)
    l3,h3 = kernel(a,'k3_kernel',256,lambda a: k3(a,debug_s))
    L = [f"; @launch kernel=k1_kernel grid=(432,1,1) block=(512,1,1) lds={l1}",
         f"; @launch kernel=k2_kernel grid=(513,1,1) block=(256,1,1) lds={l2}",
         f"; @launch kernel=k3_kernel grid=(256,1,1) block=(512,1,1) lds={l3}"][:nl]
    hdr = "; generated by dev/gen.py\n" + "\n".join(L) + """
.amdgcn_target "amdgcn-amd-amdhsa--gfx950"
.text
"""
    txt = hdr + a.text() + '.section .rodata,"a"\n' + desc('k1_kernel',144)+desc('k2_kernel',128)+desc('k3_kernel',128)
    open(out,'w').write(txt)
    print('lds',l1,l2,l3,'vgpr hi',h1,h2,h3)

if __name__ == '__main__':
    main(sys.argv[1], debug_s=(len(sys.argv)>2), nl=int(sys.argv[3]) if len(sys.argv)>3 else 3)
```

```python
from gen_common import *

def silu_bf16(a, d, x, t0):
    round_bf16(a, x, x)
    a(f'v_mul_f32 v{t0}, 0xbfb8aa3b, v{x}')
    a(f'v_exp_f32 v{t0}, v{t0}')
    a(f'v_add_f32 v{t0}, 1.0, v{t0}')
    a(f'v_rcp_f32 v{t0}, v{t0}')
    a(f'v_mul_f32 v{d}, v{x}, v{t0}')
    a(f'v_cvt_pk_bf16_f32 v{d}, v{d}, v{d}')

def gemm1_role(a, wg0):
    PA=144; PB=320; BUF=128*PA+64*PB
    LB=128*PA
    a('s_load_dwordx2 s[4:5], s[0:1], 0')
    a('s_load_dwordx2 s[6:7], s[0:1], 32')
    a('s_load_dwordx2 s[10:11], s[0:1], 64')
    a(f's_sub_u32 s28, s2, {wg0}')
    a('s_mul_hi_u32 s29, s28, 0x1745d175')
    a('s_mul_i32 s30, s29, 11')
    a('s_sub_u32 s30, s28, s30')
    a('s_waitcnt lgkmcnt(0)')
    srd(a,12,4,2048*512*2); srd(a,16,6,512*1376*2); srd(a,24,10,WS_SIZE)
    X0=48; G=[80,88]; A0=48; XC=[96,104]
    FA=[24,36]; FB=[28,40]
    a('v_lshrrev_b32 v2, 2, v0')
    a('v_and_b32 v3, 3, v0')
    a('s_lshl_b32 s31, s29, 17')
    a('v_lshlrev_b32 v4, 10, v2')
    a('v_lshl_add_u32 v4, v3, 5, v4')
    a('v_add_u32 v4, s31, v4')
    for it in range(8):
        for hh in range(2):
            r=X0+it*8+hh*4
            a(f'buffer_load_dwordx4 v[{r}:{r+3}], v4, s[12:15], 0 offen offset:{it*128+hh*16}')
    a('v_lshrrev_b32 v5, 3, v0')
    a('v_and_b32 v6, 7, v0')
    a('s_mov_b32 s33, 2752')
    a('v_mul_lo_u32 v7, v5, s33')
    a('v_lshl_add_u32 v7, v6, 5, v7')
    a('s_lshl_b32 s34, s30, 8')
    a('v_add_u32 v7, s34, v7')
    def bload(g):
        a(f'buffer_load_dwordx4 v[{g}:{g+3}], v7, s[16:19], s44 offen')
        a(f'buffer_load_dwordx4 v[{g+4}:{g+7}], v7, s[16:19], s44 offen offset:16')
        a(f's_add_u32 s44, s44, {64*2752}')
    a('s_mov_b32 s44, 0')
    a(f'v_mul_u32_u24 v8, {PA}, v2')
    a('v_lshl_add_u32 v8, v3, 5, v8')
    a(f'v_mul_u32_u24 v9, {PB}, v5')
    a('v_lshl_add_u32 v9, v6, 5, v9')
    a(f'v_add_u32 v9, {LB}, v9')
    a('v_and_b32 v10, 63, v0')
    a('v_lshrrev_b32 v11, 6, v0')
    a('v_and_b32 v12, 3, v11')
    a('v_lshrrev_b32 v13, 2, v11')
    a('v_and_b32 v14, 31, v10')
    a('v_lshl_add_u32 v14, v12, 5, v14')
    a(f'v_mul_u32_u24 v14, {PA}, v14')
    a('v_lshrrev_b32 v15, 5, v10')
    a('v_lshl_add_u32 v14, v15, 4, v14')
    a('v_lshlrev_b32 v15, 3, v15')
    a('v_bfe_u32 v16, v10, 2, 2')
    a('v_add_u32 v15, v15, v16')
    a(f'v_mul_u32_u24 v15, {PB}, v15')
    a('v_bfe_u32 v16, v10, 4, 1')
    a('v_lshlrev_b32 v16, 5, v16')
    a('v_and_b32 v17, 3, v10')
    a('v_lshl_add_u32 v16, v17, 3, v16')
    a('v_lshl_add_u32 v16, v13, 7, v16')
    a('v_add_u32 v15, v15, v16')
    a(f'v_add_u32 v15, {LB}, v15')
    a('s_waitcnt vmcnt(0)')
    a('v_mov_b32 v18, 0'); a('v_mov_b32 v19, 0')
    for r in range(X0, X0+64):
        a(f'v_lshlrev_b32 v20, 16, v{r}'); a(f'v_and_b32 v21, 0xffff0000, v{r}')
        a('v_add_f32 v18, v18, v20'); a('v_add_f32 v19, v19, v21')
    a('v_add_f32 v18, v18, v19')
    a('v_add_f32_dpp v18, v18, v18 quad_perm:[1,0,3,2] row_mask:0xf bank_mask:0xf')
    a('v_add_f32_dpp v18, v18, v18 quad_perm:[2,3,0,1] row_mask:0xf bank_mask:0xf')
    a('v_mul_f32 v18, 0x3b000000, v18')
    a('v_mov_b32 v19, 0'); a('v_mov_b32 v22, 0')
    for r in range(X0, X0+64):
        a(f'v_lshlrev_b32 v20, 16, v{r}'); a(f'v_and_b32 v21, 0xffff0000, v{r}')
        a('v_sub_f32 v20, v20, v18'); a('v_sub_f32 v21, v21, v18')
        a('v_fma_f32 v19, v20, v20, v19'); a('v_fma_f32 v22, v21, v21, v22')
    a('v_add_f32 v19, v19, v22')
    a('v_add_f32_dpp v19, v19, v19 quad_perm:[1,0,3,2] row_mask:0xf bank_mask:0xf')
    a('v_add_f32_dpp v19, v19, v19 quad_perm:[2,3,0,1] row_mask:0xf bank_mask:0xf')
    a('v_mul_f32 v19, 0x3b000000, v19')
    round_bf16(a,18,18); round_bf16(a,19,19)
    a('v_add_f32 v19, 0x3727c5ac, v19')
    round_bf16(a,19,19)
    a('v_sqrt_f32 v19, v19')
    round_bf16(a,19,19)
    a('v_rcp_f32 v19, v19')
    def xload(it):
        c=XC[it%2]
        a(f'buffer_load_dwordx4 v[{c}:{c+3}], v4, s[12:15], 0 offen offset:{it*128}')
        a(f'buffer_load_dwordx4 v[{c+4}:{c+7}], v4, s[12:15], 0 offen offset:{it*128+16}')
    xload(0); xload(1); bload(G[0]); bload(G[1])
    for i in range(32): a(f'v_mov_b32 v{A0+i}, 0')
    def norm(it):
        for r in range(XC[it%2], XC[it%2]+8):
            a(f'v_lshlrev_b32 v20, 16, v{r}'); a(f'v_and_b32 v21, 0xffff0000, v{r}')
            a('v_sub_f32 v20, v20, v18'); a('v_sub_f32 v21, v21, v18')
            a('v_cvt_pk_bf16_f32 v22, v20, v21')
            a('v_lshlrev_b32 v20, 16, v22'); a('v_and_b32 v21, 0xffff0000, v22')
            a('v_mul_f32 v20, v20, v19'); a('v_mul_f32 v21, v21, v19')
            a(f'v_cvt_pk_bf16_f32 v{r}, v20, v21')
    def stage(it):
        b=(it%2)*BUF; r=XC[it%2]; g=G[it%2]
        a(f'ds_write_b128 v8, v[{r}:{r+3}] offset:{b}'); a(f'ds_write_b128 v8, v[{r+4}:{r+7}] offset:{b+16}')
        a(f'ds_write_b128 v9, v[{g}:{g+3}] offset:{b}'); a(f'ds_write_b128 v9, v[{g+4}:{g+7}] offset:{b+16}')
    def fread(it,kk,fs):
        b=(it%2)*BUF
        a(f'ds_read_b128 v[{FA[fs]}:{FA[fs]+3}], v14 offset:{b+kk*32}')
        for nb in range(2):
            a(f'ds_read_b64_tr_b16 v[{FB[fs]+nb*4}:{FB[fs]+nb*4+1}], v15 offset:{b+kk*16*PB+nb*64}')
            a(f'ds_read_b64_tr_b16 v[{FB[fs]+nb*4+2}:{FB[fs]+nb*4+3}], v15 offset:{b+(kk*16+4)*PB+nb*64}')
    a('s_waitcnt vmcnt(6)')
    norm(0)
    a('s_waitcnt vmcnt(2)')
    stage(0)
    a('s_waitcnt lgkmcnt(0)'); a('s_barrier')
    for it in range(8):
        if it<6: xload(it+2); bload(G[it%2])
        fread(it,0,0)
        for kk in range(4):
            if kk<3: fread(it,kk+1,(kk+1)%2)
            if kk==0 and it<7:
                a(f's_waitcnt vmcnt({6 if it<6 else 0})')
                norm(it+1)
            a(f's_waitcnt lgkmcnt({5 if kk<3 else 0})')
            fs=kk%2
            for nb in range(2):
                a(f'v_mfma_f32_32x32x16_bf16 v[{A0+16*nb}:{A0+16*nb+15}], v[{FA[fs]}:{FA[fs]+3}], v[{FB[fs]+nb*4}:{FB[fs]+nb*4+3}], v[{A0+16*nb}:{A0+16*nb+15}]')
        if it<7:
            a(f's_waitcnt vmcnt({4 if it<6 else 0})')
            stage(it+1)
            a('s_waitcnt lgkmcnt(0)'); a('s_barrier')
    a('s_nop 15'); a('s_nop 7')
    a('s_barrier')
    PE=272
    a('v_lshrrev_b32 v2, 5, v10')
    a('v_lshlrev_b32 v2, 2, v2')
    a('v_lshl_add_u32 v2, v12, 5, v2')
    a(f'v_mul_u32_u24 v2, {PE}, v2')
    a('v_and_b32 v3, 31, v10')
    a('v_lshl_add_u32 v3, v13, 6, v3')
    a('v_lshl_add_u32 v2, v3, 1, v2')
    for nb in range(2):
        for i in range(16):
            r=A0+16*nb+i
            silu_bf16(a, r, r, 20)
            a(f'ds_write_b16 v2, v{r} offset:{((i&3)+8*(i>>2))*PE+nb*64}')
    a('s_waitcnt lgkmcnt(0)'); a('s_barrier')
    a('v_lshrrev_b32 v2, 4, v0')
    a('v_and_b32 v3, 15, v0')
    a(f'v_mul_u32_u24 v4, {PE}, v2')
    a('v_lshl_add_u32 v4, v3, 4, v4')
    a('s_lshl_b32 s31, s29, 7')
    a('v_add_u32 v2, s31, v2')
    a('v_mul_lo_u32 v2, v2, s33')
    a('s_lshl_b32 s34, s30, 7')
    a('v_lshl_add_u32 v3, v3, 3, s34')
    a('v_cmp_gt_u32 vcc, 1376, v3')
    a('v_lshl_add_u32 v2, v3, 1, v2')
    a(f'v_add_u32 v2, {WS_H}, v2')
    a('s_and_saveexec_b64 s[36:37], vcc')
    for p in range(4):
        a(f'ds_read_b128 v[24:27], v4 offset:{32*p*PE}')
        a('s_waitcnt lgkmcnt(0)')
        a(f's_mov_b32 s38, {32*p*2752}')
        a('buffer_store_dwordx4 v[24:27], v2, s[24:27], s38 offen')
    a('s_mov_b64 exec, s[36:37]')
    return 2*BUF

def gemm2_role(a, wg0):
    PA=144; PB=192; LB=64*PA; BUF=64*PA+64*PB
    a('s_load_dwordx2 s[6:7], s[0:1], 40')
    a('s_load_dwordx2 s[10:11], s[0:1], 64')
    a(f's_sub_u32 s28, s2, {wg0}')
    a('s_lshr_b32 s29, s28, 3')
    a('s_and_b32 s30, s28, 7')
    a('s_waitcnt lgkmcnt(0)')
    srd(a,16,6,1376*512*2); srd(a,24,10,WS_SIZE)
    a('v_lshrrev_b32 v2, 2, v0')
    a('v_and_b32 v3, 3, v0')
    a('s_lshl_b32 s31, s29, 6')
    a('v_add_u32 v4, s31, v2')
    a('s_mov_b32 s33, 2752')
    a('v_mul_lo_u32 v4, v4, s33')
    a('v_lshl_add_u32 v4, v3, 5, v4')
    a(f'v_add_u32 v4, {WS_H}, v4')
    a('v_lshlrev_b32 v7, 10, v2')
    a('v_lshl_add_u32 v7, v3, 5, v7')
    a('s_lshl_b32 s34, s30, 7')
    a('v_add_u32 v7, s34, v7')
    a(f'v_mul_u32_u24 v8, {PA}, v2')
    a('v_lshl_add_u32 v8, v3, 5, v8')
    a(f'v_mul_u32_u24 v9, {PB}, v2')
    a('v_lshl_add_u32 v9, v3, 5, v9')
    a(f'v_add_u32 v9, {LB}, v9')
    a('v_and_b32 v10, 63, v0')
    a('v_lshrrev_b32 v11, 6, v0')
    a('v_and_b32 v12, 1, v11')
    a('v_lshrrev_b32 v13, 1, v11')
    a('v_and_b32 v14, 31, v10')
    a('v_lshl_add_u32 v14, v12, 5, v14')
    a(f'v_mul_u32_u24 v14, {PA}, v14')
    a('v_lshrrev_b32 v15, 5, v10')
    a('v_lshl_add_u32 v14, v15, 4, v14')
    a('v_lshlrev_b32 v15, 3, v15')
    a('v_bfe_u32 v16, v10, 2, 2')
    a('v_add_u32 v15, v15, v16')
    a(f'v_mul_u32_u24 v15, {PB}, v15')
    a('v_bfe_u32 v16, v10, 4, 1')
    a('v_lshlrev_b32 v16, 5, v16')
    a('v_and_b32 v17, 3, v10')
    a('v_lshl_add_u32 v16, v17, 3, v16')
    a('v_lshl_add_u32 v16, v13, 6, v16')
    a('v_add_u32 v15, v15, v16')
    a(f'v_add_u32 v15, {LB}, v15')
    A0=80; G=[48,64]; FA=[24,32]; FB=[28,36]
    for i in range(16): a(f'v_mov_b32 v{A0+i}, 0')
    def gload(g):
        a(f'buffer_load_dwordx4 v[{g}:{g+3}], v4, s[24:27], s44 offen')
        a(f'buffer_load_dwordx4 v[{g+4}:{g+7}], v4, s[24:27], s44 offen offset:16')
        a(f'buffer_load_dwordx4 v[{g+8}:{g+11}], v7, s[16:19], s45 offen')
        a(f'buffer_load_dwordx4 v[{g+12}:{g+15}], v7, s[16:19], s45 offen offset:16')
        a('s_add_u32 s44, s44, 128'); a(f's_add_u32 s45, s45, {64*1024}')
    def stage(par):
        b=par*BUF; g=G[par]
        a(f'ds_write_b128 v8, v[{g}:{g+3}] offset:{b}'); a(f'ds_write_b128 v8, v[{g+4}:{g+7}] offset:{b+16}')
        a(f'ds_write_b128 v9, v[{g+8}:{g+11}] offset:{b}'); a(f'ds_write_b128 v9, v[{g+12}:{g+15}] offset:{b+16}')
    def fread(par,kk,fs):
        b=par*BUF
        a(f'ds_read_b128 v[{FA[fs]}:{FA[fs]+3}], v14 offset:{b+kk*32}')
        a(f'ds_read_b64_tr_b16 v[{FB[fs]}:{FB[fs]+1}], v15 offset:{b+kk*16*PB}')
        a(f'ds_read_b64_tr_b16 v[{FB[fs]+2}:{FB[fs]+3}], v15 offset:{b+(kk*16+4)*PB}')
    def compute(par,nk):
        fread(par,0,0)
        for kk in range(nk):
            if kk<nk-1: fread(par,kk+1,(kk+1)%2)
            a(f's_waitcnt lgkmcnt({3 if kk<nk-1 else 0})')
            fs=kk%2
            a(f'v_mfma_f32_32x32x16_bf16 v[{A0}:{A0+15}], v[{FA[fs]}:{FA[fs]+3}], v[{FB[fs]}:{FB[fs]+3}], v[{A0}:{A0+15}]')
    a('s_mov_b32 s44, 0'); a('s_mov_b32 s45, 0')
    gload(G[0]); gload(G[1])
    a('s_waitcnt vmcnt(4)')
    stage(0)
    a('s_waitcnt lgkmcnt(0)'); a('s_barrier')
    a('s_mov_b32 s46, 0')
    a.label('L_g2_loop')
    for par in range(2):
        gload(G[par])
        compute(par,4)
        a('s_waitcnt vmcnt(4)')
        stage(1-par)
        a('s_waitcnt lgkmcnt(0)'); a('s_barrier')
        if par==0:
            a('s_add_u32 s46, s46, 1')
            a('s_cmp_eq_u32 s46, 11')
            a('s_cbranch_scc1 L_g2_done')
    a('s_branch L_g2_loop')
    a.label('L_g2_done')
    compute(1,2)
    a('s_waitcnt vmcnt(0)')
    a('s_nop 15'); a('s_nop 7')
    a('s_mov_b32 s48, 8192'); a('s_mov_b32 s49, 16384'); a('s_mov_b32 s50, 24576')
    a('v_lshrrev_b32 v2, 5, v10')
    a('v_lshlrev_b32 v2, 2, v2')
    a('v_lshl_add_u32 v2, v12, 5, v2')
    a('v_add_u32 v2, s31, v2')
    a('v_lshlrev_b32 v2, 10, v2')
    a('v_and_b32 v3, 31, v10')
    a('v_lshl_add_u32 v3, v13, 5, v3')
    a('s_lshl_b32 s34, s30, 6')
    a('v_add_u32 v3, s34, v3')
    a('v_lshl_add_u32 v4, v3, 1, v2')
    a(f'v_add_u32 v4, {WS_G}, v4')
    for i in range(16):
        r=A0+i
        silu_bf16(a, r, r, 20)
        so = '0' if i<4 else f's{47+(i>>2)}'
        a(f'buffer_store_short v{r}, v4, s[24:27], {so} offen offset:{(i&3)*1024}')
    return 2*BUF
```

```python
import sys
from gen_common import *
from gemm import gemm1_role, gemm2_role

def k1_roleA(a):
    P = Pool(8, 127); F = FFT(a, P)
    LDS_T = 16384; PX = 72; LDS_W = (LDS_T + 257*PX + 15)//16*16
    a('s_load_dwordx2 s[4:5], s[0:1], 0')
    a('s_load_dwordx2 s[6:7], s[0:1], 8')
    a('s_load_dwordx2 s[8:9], s[0:1], 16')
    a('s_load_dwordx2 s[10:11], s[0:1], 64')
    vL=1
    a(f'v_and_b32 v{vL}, 63, v0')
    a('v_lshrrev_b32 v2, 6, v0')
    a('v_readfirstlane_b32 s28, v2')
    a('s_lshl_b32 s29, s2, 3')
    a('s_add_u32 s29, s29, s28')
    a('s_waitcnt lgkmcnt(0)')
    srd(a,12,4,2048*512*2); srd(a,16,6,2048*257*2); srd(a,20,8,2048*257*2); srd(a,24,10,WS_SIZE)
    a('s_lshl_b32 s30, s29, 10')
    a(f'v_lshlrev_b32 v2, 2, v{vL}')
    a('v_add_u32 v2, s30, v2')
    xr=[P.get() for _ in range(4)]
    for t in range(4): a(f'buffer_load_dword v{xr[t]}, v2, s[12:15], 0 offen offset:{256*t}')
    a('s_mul_i32 s30, s29, 514')
    a(f'v_lshlrev_b32 v3, 1, v{vL}')
    a('v_add_u32 v3, s30, v3')
    a('v_mov_b32 v4, s30')
    wr=[P.get() for _ in range(5)]; wi=[P.get() for _ in range(5)]
    for t in range(4): a(f'buffer_load_ushort v{wr[t]}, v3, s[16:19], 0 offen offset:{128*t}')
    a(f'buffer_load_ushort v{wr[4]}, v4, s[16:19], 0 offen offset:512')
    for t in range(4): a(f'buffer_load_ushort v{wi[t]}, v3, s[20:23], 0 offen offset:{128*t}')
    a(f'buffer_load_ushort v{wi[4]}, v4, s[20:23], 0 offen offset:512')
    a('s_lshl_b32 s31, s28, 11')
    a('s_waitcnt vmcnt(10)')
    Z=[F.new() for _ in range(4)]
    for t in range(4):
        a(f'v_lshlrev_b32 v{Z[t].re}, 16, v{xr[t]}')
        a(f'v_and_b32 v{Z[t].im}, 0xffff0000, v{xr[t]}')
    P.put(*xr)
    s=P.get(); s2=P.get()
    a(f'v_add_f32 v{s}, v{Z[0].re}, v{Z[0].im}')
    for t in range(1,4):
        a(f'v_add_f32 v{s}, v{s}, v{Z[t].re}'); a(f'v_add_f32 v{s}, v{s}, v{Z[t].im}')
    dpp_reduce_sum(a, s, 32)
    a('v_mov_b32 v5, s32')
    a('v_mul_f32 v5, 0x3b000000, v5')
    a(f'v_mov_b32 v{s2}, 0')
    for t in range(4):
        for r in (Z[t].re, Z[t].im):
            a(f'v_sub_f32 v{s}, v{r}, v5')
            a(f'v_fma_f32 v{s2}, v{s}, v{s}, v{s2}')
    dpp_reduce_sum(a, s2, 33)
    a('v_mov_b32 v6, s33')
    a('v_mul_f32 v6, 0x3b000000, v6')
    round_bf16(a,5,5); round_bf16(a,6,6)
    a('v_add_f32 v6, 0x3727c5ac, v6')
    round_bf16(a,6,6)
    a('v_sqrt_f32 v6, v6')
    round_bf16(a,6,6)
    a('v_rcp_f32 v6, v6')
    for t in range(4):
        for r in (Z[t].re, Z[t].im):
            a(f'v_sub_f32 v{r}, v{r}, v5')
            round_bf16(a,r,r)
            a(f'v_mul_f32 v{r}, v{r}, v6')
            round_bf16(a,r,r)
    P.put(s,s2)
    a('s_waitcnt vmcnt(0)')
    for t in range(5):
        a(f'v_lshl_or_b32 v{wr[t]}, v{wi[t]}, 16, v{wr[t]}')
    P.put(*wi)
    a(f'v_lshlrev_b32 v2, 5, v{vL}')
    a('s_lshl_b32 s34, s28, 2')
    a(f's_add_u32 s34, s34, {LDS_W}')
    a('v_add_u32 v2, s34, v2')
    for t in range(4): a(f'ds_write_b32 v2, v{wr[t]} offset:{2048*t}')
    a('v_mov_b32 v3, s34')
    a(f'ds_write_b32 v3, v{wr[4]} offset:{256*32}')
    P.put(*wr)
    vRd=P.get()
    a(f'v_lshlrev_b32 v{vRd}, 3, v{vL}')
    a(f'v_add_u32 v{vRd}, s31, v{vRd}')
    for st in range(4):
        Ns=4**st
        if st>0:
            kf=P.get(); fr=P.get()
            a(f'v_and_b32 v{kf}, {Ns-1}, v{vL}')
            a(f'v_cvt_f32_u32 v{kf}, v{kf}')
            for t in range(1,4):
                a(f'v_mul_f32 v{fr}, {float(t)/(4*Ns)!r}, v{kf}')
                c,sn=F.twiddle(fr)
                Z[t]=F.cmul(Z[t],c,sn); P.put(c,sn)
            P.put(kf,fr)
        Z=F.dft4(Z,-1)
        if st<3:
            w=P.get()
            a(f'v_and_b32 v{w}, {Ns-1}, v{vL}')
            a(f'v_lshrrev_b32 v2, {2*st}, v{vL}')
            a(f'v_lshl_add_u32 v{w}, v2, {2*st+2}, v{w}')
            a(f'v_lshlrev_b32 v{w}, 3, v{w}')
            a(f'v_add_u32 v{w}, s31, v{w}')
            for t in range(4): a(f'ds_write_b64 v{w}, {pr(Z[t])} offset:{8*Ns*t}')
            P.put(w)
            a('s_waitcnt lgkmcnt(0)')
            for t in range(4): a(f'ds_read_b64 {pr(Z[t])}, v{vRd} offset:{512*t}')
            a('s_waitcnt lgkmcnt(0)')
    for t in range(4): a(f'ds_write_b64 v{vRd}, {pr(Z[t])} offset:{512*t}')
    a('s_waitcnt lgkmcnt(0)')
    M=[F.new() for _ in range(4)]
    for t in range(4):
        a(f'v_sub_u32 v2, {256-64*t}, v{vL}')
        a('v_and_b32 v2, 255, v2')
        a('v_lshlrev_b32 v2, 3, v2')
        a('v_add_u32 v2, s31, v2')
        a(f'ds_read_b64 {pr(M[t])}, v2')
    a('s_lshl_b32 s34, s28, 3')
    a(f's_add_u32 s34, s34, {LDS_T}')
    vT=P.get(); kf=P.get()
    a(f'v_mul_u32_u24 v{vT}, {PX}, v{vL}')
    a(f'v_add_u32 v{vT}, s34, v{vT}')
    a(f'v_cvt_f32_u32 v{kf}, v{vL}')
    a('s_waitcnt lgkmcnt(0)')
    for t in range(4):
        fr=P.get(); c=P.get(); sn=P.get(); X=F.new()
        a(f'v_add_f32 v{fr}, {float(64*t)}, v{kf}')
        a(f'v_mul_f32 v{fr}, 0x3b000000, v{fr}')
        a(f'v_cos_f32 v{c}, v{fr}'); a(f'v_sin_f32 v{sn}, v{fr}')
        er=P.get(); ei=P.get(); orr=P.get(); oi=P.get()
        a(f'v_add_f32 v{er}, v{Z[t].re}, v{M[t].re}')
        a(f'v_sub_f32 v{ei}, v{Z[t].im}, v{M[t].im}')
        a(f'v_sub_f32 v{orr}, v{Z[t].re}, v{M[t].re}')
        a(f'v_add_f32 v{oi}, v{Z[t].im}, v{M[t].im}')
        a(f'v_fma_f32 v{X.re}, v{c}, v{oi}, v{er}')
        a(f'v_fma_f32 v{X.re}, -v{sn}, v{orr}, v{X.re}')
        a(f'v_fma_f32 v{X.im}, -v{c}, v{orr}, v{ei}')
        a(f'v_fma_f32 v{X.im}, -v{sn}, v{oi}, v{X.im}')
        a(f'ds_write_b64 v{vT}, {pr(X)} offset:{64*t*PX}')
        if t==0:
            a(f'v_sub_f32 v6, v{Z[0].re}, v{Z[0].im}')
            a('v_add_f32 v6, v6, v6')
            a('v_mov_b32 v7, 0')
            a('v_mov_b32 v2, s34')
            a('s_mov_b64 s[36:37], exec')
            a('s_mov_b64 exec, 1')
            a(f'ds_write_b64 v2, v[6:7] offset:{256*PX}')
            a('s_mov_b64 exec, s[36:37]')
        P.put(fr,c,sn,er,ei,orr,oi); F.rel(X)
    a('s_waitcnt lgkmcnt(0)')
    a('s_barrier')
    a('v_lshrrev_b32 v2, 2, v0')
    a('v_and_b32 v3, 3, v0')
    a(f'v_mul_u32_u24 v4, {PX}, v2')
    a('v_lshlrev_b32 v5, 4, v3')
    a('v_add_u32 v4, v4, v5')
    a(f'v_add_u32 v4, {LDS_T}, v4')
    a('v_lshlrev_b32 v6, 14, v2')
    a('s_lshl_b32 s35, s2, 6')
    a('v_add3_u32 v6, v6, v5, s35')
    for p in range(3):
        if p==2:
            a('v_cmp_gt_u32 vcc, 4, v0')
            a('s_and_saveexec_b64 s[36:37], vcc')
        a(f'ds_read2_b64 v[8:11], v4 offset0:{(128*p*PX//8)%256} offset1:{(128*p*PX//8)%256+1}') if 128*p*PX//8 < 255 else None
        if 128*p*PX//8 >= 255:
            a(f'v_add_u32 v7, {128*p*PX}, v4')
            a('ds_read2_b64 v[8:11], v7 offset0:0 offset1:1')
        a('s_waitcnt lgkmcnt(0)')
        a('buffer_store_dwordx4 v[8:11], v6, s[24:27], 0 offen')
        if p<2: a('v_add_u32 v6, 0x200000, v6')
    a('s_mov_b64 exec, s[36:37]')
    a('v_lshrrev_b32 v2, 1, v0')
    a('v_and_b32 v3, 1, v0')
    a('v_lshlrev_b32 v4, 5, v2')
    a('v_lshlrev_b32 v5, 4, v3')
    a('v_add_u32 v4, v4, v5')
    a(f'v_add_u32 v4, {LDS_W}, v4')
    a('v_lshlrev_b32 v6, 13, v2')
    a('s_lshl_b32 s35, s2, 5')
    a(f's_add_u32 s35, s35, {WS_W}')
    a('v_add3_u32 v6, v6, v5, s35')
    for p in range(2):
        if p==1:
            a('v_cmp_gt_u32 vcc, 2, v0')
            a('s_and_saveexec_b64 s[36:37], vcc')
        a(f'ds_read_b128 v[12:15], v4 offset:{256*32*p}')
        a('s_waitcnt lgkmcnt(0)')
        a('buffer_store_dwordx4 v[12:15], v6, s[24:27], 0 offen')
        if p<1: a('v_add_u32 v6, 0x200000, v6')
    a('s_mov_b64 exec, s[36:37]')
    return LDS_W + 257*32, P.hi_water

def k2_roleA(a):
    P = Pool(8, 127); F = FFT(a, P)
    a('s_load_dwordx2 s[10:11], s[0:1], 64')
    a('s_waitcnt lgkmcnt(0)')
    srd(a,24,10,WS_SIZE)
    a('s_lshl_b32 s30, s2, 14')
    a('v_lshlrev_b32 v2, 3, v0')
    a('v_add_u32 v2, s30, v2')
    X=[F.new() for _ in range(8)]
    a('s_mov_b32 s40, 0'); a('s_mov_b32 s41, 4096'); a('s_mov_b32 s42, 8192'); a('s_mov_b32 s43, 12288')
    for i in range(8): a(f'buffer_load_dwordx2 {pr(X[i])}, v2, s[24:27], s{40+i//2} offen offset:{2048*(i%2)}')
    Wr=[P.get() for _ in range(8)]
    a('s_lshl_b32 s31, s2, 13')
    a(f's_add_u32 s31, s31, {WS_W}')
    for h in range(2):
        a('v_lshrrev_b32 v3, 6, v0')
        if h: a('v_add_u32 v3, 4, v3')
        a('v_bfe_u32 v4, v0, 3, 3')
        a('v_lshl_add_u32 v3, v4, 3, v3')
        a('v_and_b32 v4, 7, v0')
        a('v_lshl_add_u32 v3, v4, 6, v3')
        a('v_lshlrev_b32 v3, 2, v3')
        a('v_add_u32 v3, s31, v3')
        for d in range(4): a(f'buffer_load_dword v{Wr[4*h+d]}, v3, s[24:27], s{40+d//2} offen offset:{2048*(d%2)}')
    tf=P.get(); fr=P.get()
    twA=[];twB=[];twC=[]
    a(f'v_cvt_f32_u32 v{tf}, v0')
    for i in range(1,8):
        a(f'v_mul_f32 v{fr}, {float(i)/2048!r}, v{tf}')
        twA.append(F.twiddle(fr))
    a(f'v_and_b32 v{tf}, 31, v0'); a(f'v_cvt_f32_u32 v{tf}, v{tf}')
    for i in range(1,8):
        a(f'v_mul_f32 v{fr}, {float(i)/256!r}, v{tf}')
        twB.append(F.twiddle(fr))
    a(f'v_and_b32 v{tf}, 3, v0'); a(f'v_cvt_f32_u32 v{tf}, v{tf}')
    for i in range(1,8):
        a(f'v_mul_f32 v{fr}, {float(i)/32!r}, v{tf}')
        twC.append(F.twiddle(fr))
    P.put(tf,fr)
    vA=P.get(); vB=P.get(); vC=P.get(); vD=[P.get(),P.get()]
    a('v_lshrrev_b32 v3, 5, v0'); a('v_mul_u32_u24 v3, 36, v3'); a('v_and_b32 v4, 31, v0'); a('v_add_u32 v3, v3, v4')
    a(f'v_lshlrev_b32 v{vA}, 3, v3')
    a('v_lshrrev_b32 v3, 5, v0'); a('v_mul_u32_u24 v3, 288, v3'); a('v_add_u32 v3, v3, v4')
    a(f'v_lshlrev_b32 v{vB}, 3, v3')
    a('v_lshrrev_b32 v3, 5, v0'); a('v_mul_u32_u24 v3, 288, v3'); a('v_bfe_u32 v4, v0, 2, 3'); a('v_mul_u32_u24 v4, 36, v4'); a('v_add_u32 v3, v3, v4'); a('v_and_b32 v4, 3, v0'); a('v_add_u32 v3, v3, v4')
    a(f'v_lshlrev_b32 v{vC}, 3, v3')
    a('v_lshrrev_b32 v3, 6, v0'); a('v_mul_u32_u24 v3, 288, v3'); a('v_bfe_u32 v4, v0, 3, 3'); a('v_mul_u32_u24 v4, 36, v4'); a('v_add_u32 v3, v3, v4'); a('v_and_b32 v4, 7, v0'); a('v_lshl_add_u32 v3, v4, 2, v3')
    a(f'v_lshlrev_b32 v{vD[0]}, 3, v3')
    a(f'v_add_u32 v{vD[1]}, {4*288*8}, v{vD[0]}')
    a('s_waitcnt vmcnt(8)')
    Y=F.dft8(X,-1)
    for i in range(1,8): Y[i]=F.cmul(Y[i],*twA[i-1])
    for i in range(8): a(f'ds_write_b64 v{vA}, {pr(Y[i])} offset:{288*8*i}')
    F.rel(*Y)
    a('s_waitcnt lgkmcnt(0)'); a('s_barrier')
    def stage(vaddr, stride, tw):
        X=[F.new() for _ in range(8)]
        for i in range(8): a(f'ds_read_b64 {pr(X[i])}, v{vaddr} offset:{stride*8*i}')
        a('s_waitcnt lgkmcnt(0)')
        Y=F.dft8(X,-1)
        for i in range(1,8): Y[i]=F.cmul(Y[i],*tw[i-1])
        for i in range(8): a(f'ds_write_b64 v{vaddr}, {pr(Y[i])} offset:{stride*8*i}')
        F.rel(*Y)
        a('s_waitcnt lgkmcnt(0)'); a('s_barrier')
    stage(vB,36,twB)
    stage(vC,4,twC)
    a('s_waitcnt vmcnt(0)')
    for h in range(2):
        X=[F.new() for _ in range(4)]
        for i in range(4): a(f'ds_read_b64 {pr(X[i])}, v{vD[h]} offset:{8*i}')
        a('s_waitcnt lgkmcnt(0)')
        Y=F.dft4(X,-1)
        for d in range(4):
            w=Wr[4*h+d]; wr_=P.get(); wi_=P.get()
            a(f'v_lshlrev_b32 v{wr_}, 16, v{w}'); a(f'v_and_b32 v{wi_}, 0xffff0000, v{w}')
            a(f'v_mul_f32 v{wr_}, 0x35000000, v{wr_}'); a(f'v_mul_f32 v{wi_}, 0x35000000, v{wi_}')
            Y[d]=F.cmul(Y[d],wr_,wi_); P.put(wr_,wi_)
        Y=F.dft4(Y,+1)
        for i in range(4): a(f'ds_write_b64 v{vD[h]}, {pr(Y[i])} offset:{8*i}')
        F.rel(*Y)
    a('s_waitcnt lgkmcnt(0)'); a('s_barrier')
    def istage(vaddr, stride, tw):
        X=[F.new() for _ in range(8)]
        for i in range(8): a(f'ds_read_b64 {pr(X[i])}, v{vaddr} offset:{stride*8*i}')
        a('s_waitcnt lgkmcnt(0)')
        for i in range(1,8): X[i]=F.cmul(X[i],*tw[i-1],conj=True)
        Y=F.dft8(X,+1)
        return Y
    Y=istage(vC,4,twC)
    for i in range(8): a(f'ds_write_b64 v{vC}, {pr(Y[i])} offset:{4*8*i}')
    F.rel(*Y); a('s_waitcnt lgkmcnt(0)'); a('s_barrier')
    Y=istage(vB,36,twB)
    for i in range(8): a(f'ds_write_b64 v{vB}, {pr(Y[i])} offset:{36*8*i}')
    F.rel(*Y); a('s_waitcnt lgkmcnt(0)'); a('s_barrier')
    Y=istage(vA,288,twA)
    for i in range(8): a(f'buffer_store_dwordx2 {pr(Y[i])}, v2, s[24:27], s{40+i//2} offen offset:{2048*(i%2)}')
    return 8*288*8, P.hi_water

def k3(a, debug_s=False):
    P = Pool(20, 127); F = FFT(a, P)
    PR = 257*8+8
    LDS_R = 16384
    a('s_load_dwordx2 s[4:5], s[0:1], 0')
    a('s_load_dwordx2 s[6:7], s[0:1], 48')
    a('s_load_dwordx2 s[10:11], s[0:1], 64')
    vL=1
    a(f'v_and_b32 v{vL}, 63, v0')
    a('v_lshrrev_b32 v2, 6, v0')
    a('v_readfirstlane_b32 s28, v2')
    a('s_lshl_b32 s29, s2, 3')
    a('s_add_u32 s29, s29, s28')
    a('s_waitcnt lgkmcnt(0)')
    srd(a,12,4,2048*512*2); srd(a,16,6,2048*512*2); srd(a,24,10,WS_SIZE)
    a('v_lshrrev_b32 v2, 2, v0')
    a('v_and_b32 v3, 3, v0')
    a('v_lshlrev_b32 v6, 14, v2')
    a('v_lshlrev_b32 v5, 4, v3')
    a('s_lshl_b32 s35, s2, 6')
    a('v_add3_u32 v6, v6, v5, s35')
    a(f'v_mul_u32_u24 v4, {2*PR}, v3')
    a(f'v_lshl_add_u32 v4, v2, 3, v4')
    a(f'v_add_u32 v4, {LDS_R}, v4')
    g=[8,12,16]
    for p in range(3):
        if p==2:
            a('v_cmp_gt_u32 vcc, 4, v0')
            a('s_and_saveexec_b64 s[36:37], vcc')
        a(f'buffer_load_dwordx4 v[{g[p]}:{g[p]+3}], v6, s[24:27], 0 offen')
        if p<2: a('v_add_u32 v6, 0x200000, v6')
    a('s_mov_b64 exec, s[36:37]')
    a('s_lshl_b32 s30, s29, 10')
    a(f'v_lshlrev_b32 v7, 2, v{vL}')
    a('v_add_u32 v7, s30, v7')
    xr=[P.get() for _ in range(4)]; gr=[P.get() for _ in range(4)]
    for t in range(4): a(f'buffer_load_dword v{xr[t]}, v7, s[12:15], 0 offen offset:{256*t}')
    a(f'v_add_u32 v5, {WS_G}, v7')
    for t in range(4): a(f'buffer_load_dword v{gr[t]}, v5, s[24:27], 0 offen offset:{256*t}')
    a('s_waitcnt vmcnt(8)')
    for p in range(3):
        if p==2:
            a('v_cmp_gt_u32 vcc, 4, v0')
            a('s_and_saveexec_b64 s[36:37], vcc')
        a(f'ds_write_b64 v4, v[{g[p]}:{g[p]+1}] offset:{1024*p}')
        a(f'ds_write_b64 v4, v[{g[p]+2}:{g[p]+3}] offset:{1024*p+PR}')
    a('s_mov_b64 exec, s[36:37]')
    a('s_waitcnt lgkmcnt(0)')
    a('s_barrier')
    a(f's_mul_i32 s31, s28, {PR}')
    a(f's_add_u32 s31, s31, {LDS_R}')
    a('s_lshl_b32 s32, s28, 11')
    Y=[F.new() for _ in range(4)]; M=[F.new() for _ in range(4)]
    a(f'v_lshlrev_b32 v2, 3, v{vL}')
    a('v_add_u32 v2, s31, v2')
    for t in range(4): a(f'ds_read_b64 {pr(Y[t])}, v2 offset:{512*t}')
    for t in range(4):
        a(f'v_sub_u32 v3, {256-64*t}, v{vL}')
        a('v_lshlrev_b32 v3, 3, v3')
        a('v_add_u32 v3, s31, v3')
        a(f'ds_read_b64 {pr(M[t])}, v3')
    kf=P.get()
    a(f'v_cvt_f32_u32 v{kf}, v{vL}')
    a('s_waitcnt lgkmcnt(0)')
    a(f'v_cmp_eq_u32 vcc, 0, v{vL}')
    a(f'v_cndmask_b32 v{Y[0].im}, v{Y[0].im}, 0, vcc')
    a(f'v_cndmask_b32 v{M[0].im}, v{M[0].im}, 0, vcc')
    Z=[]
    for t in range(4):
        fr=P.get(); c=P.get(); sn=P.get()
        a(f'v_add_f32 v{fr}, {float(64*t)}, v{kf}')
        a(f'v_mul_f32 v{fr}, 0x3b000000, v{fr}')
        a(f'v_cos_f32 v{c}, v{fr}'); a(f'v_sin_f32 v{sn}, v{fr}')
        er=P.get(); ei=P.get(); dr=P.get(); di=P.get()
        a(f'v_add_f32 v{er}, v{Y[t].re}, v{M[t].re}')
        a(f'v_sub_f32 v{ei}, v{Y[t].im}, v{M[t].im}')
        a(f'v_sub_f32 v{dr}, v{Y[t].re}, v{M[t].re}')
        a(f'v_add_f32 v{di}, v{Y[t].im}, v{M[t].im}')
        z=F.new()
        a(f'v_fma_f32 v{z.re}, -v{c}, v{di}, v{er}')
        a(f'v_fma_f32 v{z.re}, -v{sn}, v{dr}, v{z.re}')
        a(f'v_fma_f32 v{z.im}, v{c}, v{dr}, v{ei}')
        a(f'v_fma_f32 v{z.im}, -v{sn}, v{di}, v{z.im}')
        Z.append(z); P.put(fr,c,sn,er,ei,dr,di)
    F.rel(*Y); F.rel(*M)
    vRd=P.get()
    a(f'v_lshlrev_b32 v{vRd}, 3, v{vL}')
    a(f'v_add_u32 v{vRd}, s32, v{vRd}')
    for st in range(4):
        Ns=4**st
        if st>0:
            k2=P.get(); fr=P.get()
            a(f'v_and_b32 v{k2}, {Ns-1}, v{vL}')
            a(f'v_cvt_f32_u32 v{k2}, v{k2}')
            for t in range(1,4):
                a(f'v_mul_f32 v{fr}, {float(t)/(4*Ns)!r}, v{k2}')
                c,sn=F.twiddle(fr)
                Z[t]=F.cmul(Z[t],c,sn,conj=True); P.put(c,sn)
            P.put(k2,fr)
        Z=F.dft4(Z,+1)
        if st<3:
            w=P.get()
            a(f'v_and_b32 v{w}, {Ns-1}, v{vL}')
            a(f'v_lshrrev_b32 v2, {2*st}, v{vL}')
            a(f'v_lshl_add_u32 v{w}, v2, {2*st+2}, v{w}')
            a(f'v_lshlrev_b32 v{w}, 3, v{w}')
            a(f'v_add_u32 v{w}, s32, v{w}')
            for t in range(4): a(f'ds_write_b64 v{w}, {pr(Z[t])} offset:{8*Ns*t}')
            P.put(w)
            a('s_waitcnt lgkmcnt(0)')
            for t in range(4): a(f'ds_read_b64 {pr(Z[t])}, v{vRd} offset:{512*t}')
            a('s_waitcnt lgkmcnt(0)')
    a('s_waitcnt vmcnt(0)')
    for t in range(4):
        o=P.get(); t0=P.get(); t1=P.get()
        if debug_s:
            a(f'v_cvt_pk_bf16_f32 v{o}, v{Z[t].re}, v{Z[t].im}')
        else:
            round_bf16(a,Z[t].re,Z[t].re); round_bf16(a,Z[t].im,Z[t].im)
            a(f'v_lshlrev_b32 v{t0}, 16, v{gr[t]}'); a(f'v_and_b32 v{t1}, 0xffff0000, v{gr[t]}')
            a(f'v_mul_f32 v{Z[t].re}, v{Z[t].re}, v{t0}'); a(f'v_mul_f32 v{Z[t].im}, v{Z[t].im}, v{t1}')
            round_bf16(a,Z[t].re,Z[t].re); round_bf16(a,Z[t].im,Z[t].im)
            a(f'v_lshlrev_b32 v{t0}, 16, v{xr[t]}'); a(f'v_and_b32 v{t1}, 0xffff0000, v{xr[t]}')
            a(f'v_add_f32 v{Z[t].re}, v{Z[t].re}, v{t0}'); a(f'v_add_f32 v{Z[t].im}, v{Z[t].im}, v{t1}')
            a(f'v_cvt_pk_bf16_f32 v{o}, v{Z[t].re}, v{Z[t].im}')
        a(f'buffer_store_dword v{o}, v7, s[16:19], 0 offen offset:{256*t}')
        P.put(o,t0,t1)
    return LDS_R + 8*PR, P.hi_water

def kernel(a, name, nwg, body):
    a.raw(f'.globl {name}\n.p2align 8\n.type {name},@function\n{name}:')
    a(f's_cmp_ge_u32 s2, {nwg}')
    a(f's_cbranch_scc1 L_{name}_end')
    r = body(a)
    a.label(f'L_{name}_end')
    a('s_endpgm')
    return r

def desc(name, vgpr):
    return f""".p2align 6
.amdhsa_kernel {name}
  .amdhsa_next_free_vgpr {vgpr}
  .amdhsa_next_free_sgpr 102
  .amdhsa_accum_offset {(vgpr+3)//4*4}
  .amdhsa_group_segment_fixed_size 0
  .amdhsa_kernarg_size 72
  .amdhsa_user_sgpr_count 2
  .amdhsa_user_sgpr_kernarg_segment_ptr 1
  .amdhsa_system_sgpr_workgroup_id_x 1
.end_amdhsa_kernel
"""

def main(out, debug_s=False, nl=3):
    a = Asm()
    def body1(a):
        a('s_cmp_lt_u32 s2, 176'); a('s_cbranch_scc1 L_k1_gemm')
        a('s_sub_u32 s2, s2, 176')
        r=k1_roleA(a)
        a('s_endpgm'); a.label('L_k1_gemm')
        l=gemm1_role(a,0)
        return max(r[0],l), r[1]
    def body2(a):
        a('s_cmp_lt_u32 s2, 256'); a('s_cbranch_scc1 L_k2_gemm')
        a('s_sub_u32 s2, s2, 256')
        r=k2_roleA(a)
        a('s_endpgm'); a.label('L_k2_gemm')
        l=gemm2_role(a,0)
        return max(r[0],l), r[1]
    l1,h1 = kernel(a,'k1_kernel',256+176,body1)
    l2,h2 = kernel(a,'k2_kernel',257+256,body2)
    l3,h3 = kernel(a,'k3_kernel',256,lambda a: k3(a,debug_s))
    L = [f"; @launch kernel=k1_kernel grid=(432,1,1) block=(512,1,1) lds={l1}",
         f"; @launch kernel=k2_kernel grid=(513,1,1) block=(256,1,1) lds={l2}",
         f"; @launch kernel=k3_kernel grid=(256,1,1) block=(512,1,1) lds={l3}"][:nl]
    hdr = "; generated by dev/gen.py\n" + "\n".join(L) + """
.amdgcn_target "amdgcn-amd-amdhsa--gfx950"
.text
"""
    txt = hdr + a.text() + '.section .rodata,"a"\n' + desc('k1_kernel',128)+desc('k2_kernel',128)+desc('k3_kernel',128)
    open(out,'w').write(txt)
    print('lds',l1,l2,l3,'vgpr hi',h1,h2,h3)

if __name__ == '__main__':
    main(sys.argv[1], debug_s=(len(sys.argv)>2), nl=int(sys.argv[3]) if len(sys.argv)>3 else 3)
```
